```python
import torch

def _softmax(x, axis=-1):
    return torch.softmax(x, dim=axis)
def _gelu(x):
    return torch.nn.functional.gelu(x, approximate="tanh")
def _silu(x):
    return torch.nn.functional.silu(x)
def _sigmoid(x):
    return torch.sigmoid(x)
def _layernorm(x, axis=-1, eps=1e-5):
    m = x.mean(dim=axis, keepdim=True)
    v = x.var(dim=axis, keepdim=True, unbiased=False)
    return (x - m) / torch.sqrt(v + eps)
def _scatter_add(tgt, idx, src, axis=0):
    return tgt.clone().index_add_(axis, idx, src)
def _segment_sum(src, seg, n):
    out = torch.zeros((n,) + src.shape[1:], dtype=src.dtype)
    return out.index_add_(0, seg, src)
def _pad(x, pw):
    flat = tuple(v for pair in reversed(pw) for v in pair)
    return torch.nn.functional.pad(x, flat)

kernel_name = 'sequential_preLN__grouped_kv_mqa__moe_arch_mod__prompt'

def setup_inputs():

    _w = (lambda a: (lambda t: t.to(torch.bfloat16) if t.is_floating_point() else t)(torch.as_tensor(a)))
    def _A_setup():
        B, S, D, H = 1, 2048, 512, 32
        Dh = D // H
        return {
            "x": _w((lambda *s: torch.randn(*s, dtype=torch.bfloat16) * 0.05)(B, S, D)),
            "wq": _w((lambda *s: torch.randn(*s, dtype=torch.bfloat16) * 0.2)(D, H * Dh)),
            "wk": _w((lambda *s: torch.randn(*s, dtype=torch.bfloat16) * 0.2)(D, Dh)),
            "wv": _w((lambda *s: torch.randn(*s, dtype=torch.bfloat16) * 0.2)(D, Dh)),
            "wo": _w((lambda *s: torch.randn(*s, dtype=torch.bfloat16) * 0.2)(H * Dh, D)),
        }
    _A_in = _A_setup()

    def _B_setup():
        B, S, D, F, C = 1, 2048, 512, 1376, 2
        return {
            "x": _w((lambda *s: torch.randn(*s, dtype=torch.bfloat16) * 0.05)(B, S, D)),
            "w_r": _w((lambda *s: torch.randn(*s, dtype=torch.bfloat16) * 0.2)(D)),
            "w_gate": _w((lambda *s: torch.randn(*s, dtype=torch.bfloat16) * 0.2)(D, F)),
            "w_up": _w((lambda *s: torch.randn(*s, dtype=torch.bfloat16) * 0.2)(D, F)),
            "w_down": _w((lambda *s: torch.randn(*s, dtype=torch.bfloat16) * 0.2)(F, D)),
        }
    _B_in = _B_setup()

    return {
        "A_x": _A_in["x"],
        "A_wq": _A_in["wq"],
        "A_wk": _A_in["wk"],
        "A_wv": _A_in["wv"],
        "A_wo": _A_in["wo"],
        "B_x": _B_in["x"],
        "B_w_r": _B_in["w_r"],
        "B_w_gate": _B_in["w_gate"],
        "B_w_up": _B_in["w_up"],
        "B_w_down": _B_in["w_down"],
    }

def reference(A_x, A_wq, A_wk, A_wv, A_wo, B_x, B_w_r, B_w_gate, B_w_up, B_w_down):
    def _A_ref(x, wq, wk, wv, wo):
        B, S, D = x.shape
        H = 32
        Dh = D // H
        q = (lambda x, *d: x.permute(*d))((x @ wq).reshape(B, S, H, Dh), 0, 2, 1, 3)
        k = x @ wk
        v = x @ wv
        scores = torch.einsum("bhqd,bkd->bhqk", q, k) * (Dh ** -0.5)
        p = _softmax(scores, axis=-1)
        o = torch.einsum("bhqk,bkd->bhqd", p, v)
        return (lambda x, *d: x.permute(*d))(o, 0, 2, 1, 3).reshape(B, S, H * Dh) @ wo

    def _B_ref(x, w_r, w_gate, w_up, w_down):
        B, S, D = x.shape
        C = 2
        r = x @ w_r
        idx = torch.argsort(-r, axis=-1)[:, :C]
        idx_e = (lambda x, n, axis: torch.repeat_interleave(x, n, dim=axis))(idx.reshape(B, C, 1), D, axis=2)
        x_sel = (lambda x, i, axis: torch.take_along_dim(x, i, dim=axis))(x, idx_e, axis=1)
        g = _silu(x_sel @ w_gate)
        u = x_sel @ w_up
        y = (g * u) @ w_down
        r_sel = _sigmoid((lambda x, i, axis: torch.take_along_dim(x, i, dim=axis))(r, idx, axis=1))
        y = y * r_sel.reshape(B, C, 1)
        b_off = (torch.arange(B) * S).reshape(B, 1)
        flat_idx = (idx + b_off).reshape(B * C)
        zero = (x * 0.0).reshape(B * S, D)
        upd = _scatter_add(zero, flat_idx, y.reshape(B * C, D), axis=0)
        return x + upd.reshape(B, S, D)

    x = A_x
    h = x + _A_ref(_layernorm(x, axis=-1), A_wq, A_wk, A_wv, A_wo)
    h2 = h + _B_ref(_layernorm(h, axis=-1), B_w_r, B_w_gate, B_w_up, B_w_down)
    return h2
```

```python
import re

REG_RE = re.compile(r'(?<![\w.])([vsa])(?:(\d+)|\[(\d+):(\d+)\])(?![\w])')
TRANS = ('v_exp_', 'v_log_', 'v_rcp_', 'v_rsq_', 'v_sqrt_', 'v_sin_', 'v_cos_')

def regs_of(tok):
    out = set()
    for m in REG_RE.finditer(tok):
        k = m.group(1)
        if m.group(2) is not None:
            out.add((k, int(m.group(2))))
        else:
            for i in range(int(m.group(3)), int(m.group(4)) + 1):
                out.add((k, i))
    if re.search(r'\bvcc\b', tok): out.add(('vcc', 0))
    if re.search(r'\bexec\b', tok): out.add(('exec', 0))
    if re.search(r'\bm0\b', tok): out.add(('m0', 0))
    return out

def split_ops(s):
    ops, depth, cur = [], 0, ''
    for ch in s:
        if ch == '[': depth += 1
        if ch == ']': depth -= 1
        if ch == ',' and depth == 0:
            ops.append(cur.strip()); cur = ''
        else:
            cur += ch
    if cur.strip(): ops.append(cur.strip())
    return ops

class Ins:
    def __init__(self, text):
        self.text = text
        t = text.split(';')[0].strip()
        self.is_label = t.endswith(':') or t.startswith('.') or t == ''
        self.w, self.r = set(), set()
        self.kind = 'other'
        self.passes = 0
        self.srcc = set(); self.ab = set()
        self.op = ''
        if self.is_label: return
        parts = t.split(None, 1)
        op = parts[0]; self.op = op
        ops = split_ops(parts[1]) if len(parts) > 1 else []
        R = [regs_of(o) for o in ops]
        allr = set().union(*R) if R else set()
        if op.startswith('v_mfma') or op.startswith('v_smfmac'):
            self.kind = 'xdl'
            self.passes = 8 if '32x32' in op else 4
            self.w = R[0]
            if op.startswith('v_smfmac'):
                self.srcc = R[0]; self.ab = R[1] | R[2] | R[3]
            else:
                self.srcc = R[3]; self.ab = R[1] | R[2]
            self.r = self.srcc | self.ab
        elif op.startswith('v_'):
            self.kind = 'valu'
            if 'swap' in op:
                self.w = R[0] | R[1]; self.r = R[0] | R[1]
            elif op.startswith(('v_add_co', 'v_sub_co', 'v_addc_co', 'v_subb_co', 'v_mad_u64')):
                self.w = R[0] | R[1]; self.r = set().union(*R[2:])
            else:
                self.w = R[0]; self.r = set().union(*R[1:]) if len(R) > 1 else set()
                if op.startswith(('v_fmac', 'v_dot2c', 'v_pk_fmac')) or 'dpp' in op or 'sdwa' in op or op.startswith('v_writelane'):
                    self.r |= R[0]
                if op.startswith('v_cndmask') and len(ops) == 3: self.r.add(('vcc', 0))
            self.trans = op.startswith(TRANS)
            self.dpp = 'dpp' in op or 'row_' in t or 'quad_perm' in t
            self.perml = 'permlane' in op
            self.rdl = op.startswith(('v_readlane', 'v_readfirstlane'))
        elif op.startswith(('buffer_', 'global_', 'flat_')):
            self.kind = 'vmem'
            self.lds = bool(re.search(r'\blds\b', t)) or '_lds_' in op
            if 'load' in op and not self.lds:
                self.w = R[0]; self.r = set().union(*R[1:])
            elif 'atomic' in op and re.search(r'\bsc0\b', t):
                self.w = R[0]; self.r = allr
            else:
                self.r = allr
            if self.lds: self.r.add(('m0', 0))
            self.wide_store = 'store' in op and ('x4' in op or 'x3' in op)
            if self.wide_store:
                self.data = R[0] if op.startswith('buffer_') else R[1]
        elif op.startswith('ds_'):
            self.kind = 'ds'
            if op.startswith(('ds_read', 'ds_bpermute', 'ds_permute', 'ds_swizzle')) or '_rtn' in op:
                self.w = R[0]; self.r = set().union(*R[1:])
            else:
                self.r = allr
        elif op.startswith('s_'):
            self.kind = 'salu'
            if op.startswith(('s_cmp', 's_cbranch', 's_branch', 's_waitcnt', 's_barrier', 's_nop', 's_endpgm', 's_setprio', 's_sleep', 's_bitcmp')):
                self.r = allr
            else:
                self.w = R[0] if R else set(); self.r = set().union(*R[1:]) if len(R) > 1 else set()
                if 'saveexec' in op: self.w = self.w | {('exec', 0)}
        self.states = 1
        if op == 's_nop': self.states = int(ops[0], 0) + 1

def need(p, c):
    n = 0
    vw = {x for x in p.w if x[0] in 'va' and x[0] != 'vcc'}
    vw = {x for x in p.w if x[0] in ('v', 'a')}
    sw = {x for x in p.w if x[0] in ('s', 'vcc')}
    if p.kind == 'valu':
        if c.kind == 'xdl' and vw & c.r: n = max(n, 2)
        if c.kind == 'valu':
            if vw & c.r:
                if p.trans and not c.trans: n = max(n, 1)
                if c.dpp or c.perml: n = max(n, 2)
                if c.rdl: n = max(n, 1)
                if 'sdwa' in p.op or 'op_sel' in p.text: n = max(n, 1)
            if sw & c.r: n = max(n, 4 if (c.rdl or c.op.startswith('v_writelane')) else 2)
        if c.kind == 'vmem' and sw & c.r: n = max(n, 5)
        if p.trans and c.kind in ('vmem', 'ds') and vw & c.r: n = max(n, 1)
    if p.kind == 'xdl':
        big = p.passes == 8
        if c.kind == 'xdl':
            if p.w & c.ab: n = max(n, 12 if big else 8)
            if p.w & c.srcc:
                if p.w == c.srcc and p.passes == c.passes: pass
                else: n = max(n, 10 if big else 6)
            elif p.w & c.w: n = max(n, 0)
        elif c.kind in ('valu', 'vmem', 'ds'):
            if p.w & (c.r | c.w): n = max(n, 12 if big else 8)
            if p.srcc & c.w: n = max(n, 7 if big else 3)
    if p.kind == 'salu' and ('m0', 0) in p.w and c.kind == 'vmem' and getattr(c, 'lds', False): n = max(n, 1)
    if p.kind == 'vmem' and getattr(p, 'wide_store', False) and p.data & c.w and c.kind in ('valu', 'xdl', 'vmem', 'ds'): n = max(n, 2)
    return n

def pad(lines, verbose=False):
    out = []
    added = 0
    blk = 0; nblk = 0
    for ln in lines:
        if '@opt_begin' in ln:
            nblk += 1; blk = nblk; continue
        if '@opt_end' in ln:
            blk = 0; continue
        c = Ins(ln)
        c.blk = blk
        if not c.is_label:
            dist = 0; req = 0
            for p in reversed(out):
                if p.is_label: continue
                if dist >= 20: break
                k = need(p, c) - dist
                if k > req: req = k
                if p.blk == 0 or p.blk == blk: dist += p.states
            while req > 0:
                k = min(req, 16)
                nn = Ins(f'    s_nop {k-1}'); nn.blk = blk
                out.append(nn); req -= k; added += 1
                if verbose: print('pad before:', ln)
        out.append(c)
    return [i.text for i in out], added

class Asm:
    def __init__(self): self.L = []
    def e(self, s):
        for l in s.split('\n'):
            l = l.strip()
            if not l: continue
            self.L.append(l if (l.endswith(':') or l.startswith('.')) else '    ' + l)
    def c(self, s): self.L.append('    ; ' + s)
def vr(a, n=1): return f'v{a}' if n == 1 else f'v[{a}:{a+n-1}]'
def sr(a, n=1): return f's{a}' if n == 1 else f's[{a}:{a+n-1}]'
```

```python
import sys
from asmlib import *

WS_Q   = 0x000000
WS_H   = 0x200000
WS_HN  = 0x400000
WS_WOF = 0x600000
WS_K   = 0x680000
WS_VT  = 0x690000
WS_KEY = 0x6B0000
WS_ACT = 0x6B4000
WS_SEL = 0x6B6000
WS_SIZE = 0x800000
import struct
def f2u(x): return struct.unpack('<I', struct.pack('<f', x))[0]
QSCALE = 0.25 * 1.4426950408889634
L2E = 1.4426950408889634
MARGIN = 90.0

def srd(a, d, p, size):
    a.e(f's_mov_b32 s{d}, s{p}\ns_and_b32 s{d+1}, s{p+1}, 0xffff\ns_mov_b32 s{d+2}, {size:#x}\ns_mov_b32 s{d+3}, 0x20000')

def unpack(a, dst, src, n):
    for i in range(n):
        a.e(f'v_lshlrev_b32 v{dst+2*i}, 16, v{src+i}')
        a.e(f'v_and_b32 v{dst+2*i+1}, 0xffff0000, v{src+i}')

def pack(a, dst, src, n):
    for i in range(n):
        a.e(f'v_cvt_pk_bf16_f32 v{dst+i}, v{src+2*i}, v{src+2*i+1}')

def rnd_bf16(a, d, s):
    a.e(f'v_cvt_pk_bf16_f32 v{d}, v{s}, v{s}\nv_and_b32 v{d}, 0xffff0000, v{d}')

def row16_sum(a, v):
    for k in (8, 4, 2, 1):
        a.e(f'v_add_f32_dpp v{v}, v{v}, v{v} row_ror:{k} row_mask:0xf bank_mask:0xf')

def header(name):
    return [f'.globl {name}', '.p2align 8', f'.type {name},@function', f'{name}:']

def desc(name, nv, ns=96):
    return f""".amdhsa_kernel {name}
  .amdhsa_next_free_vgpr {nv}
  .amdhsa_next_free_sgpr {ns}
  .amdhsa_accum_offset {(nv+3)//4*4}
  .amdhsa_group_segment_fixed_size 0
  .amdhsa_kernarg_size 104
  .amdhsa_user_sgpr_count 2
  .amdhsa_user_sgpr_kernarg_segment_ptr 1
  .amdhsa_system_sgpr_workgroup_id_x 1
.end_amdhsa_kernel"""

A_XROW = 1040
A_EX = 32 * A_XROW
A_KV = A_EX + 16384
A_LDS = A_KV + 8192

def gen_a():
    a = Asm()
    X, D, T, W = 8, 24, 56, 64
    KVR, KVF, WOR, WOF_, XF, XKV, TMP = 128, 144, 152, 160, 168, 232, 240
    a.e('s_cmp_ge_u32 s2, 256\ns_cbranch_scc1 A_done')
    a.e('s_load_dwordx4 s[4:7], s[0:1], 0\ns_load_dwordx4 s[8:11], s[0:1], 16\ns_load_dwordx2 s[12:13], s[0:1], 32\ns_load_dwordx2 s[14:15], s[0:1], 96')
    a.e('v_lshrrev_b32 v1, 6, v0\nv_readfirstlane_b32 s36, v1\nv_and_b32 v1, 63, v0')
    a.e('s_and_b32 s37, s2, 7\ns_lshr_b32 s39, s2, 5\ns_lshl_b32 s39, s39, 3\ns_add_u32 s37, s37, s39   ; tb')
    a.e('s_lshr_b32 s38, s2, 3\ns_and_b32 s38, s38, 3    ; cg')
    a.e('s_mov_b32 s40, 0x05040100\ns_mov_b32 s41, 0x07060302')
    a.e('v_lshlrev_b32 v2, 4, v1          ; lane*16')
    a.e('v_and_b32 v5, 15, v1             ; i\nv_lshrrev_b32 v6, 4, v1          ; g')
    a.e('v_lshlrev_b32 v3, 13, v6\nv_lshl_add_u32 v3, v5, 2, v3     ; g*8192 + i*4')
    a.e('v_lshlrev_b32 v4, 8, v6\nv_lshl_add_u32 v4, v5, 1, v4     ; g*256 + i*2')
    a.e('s_and_b32 s60, s36, 3            ; c4\ns_lshr_b32 s61, s36, 2           ; kh')
    a.e('s_waitcnt lgkmcnt(0)')
    srd(a, 16, 4, 2097152); srd(a, 20, 6, 524288)
    a.e('s_cmp_lt_u32 s38, 2\ns_cselect_b32 s8, s8, s10\ns_cselect_b32 s9, s9, s11')
    srd(a, 24, 8, 16384); srd(a, 28, 12, 524288); srd(a, 32, 14, WS_SIZE)
    a.e('s_cmp_lg_u32 s36, 7\ns_cbranch_scc1 A_nowo1')
    a.e('s_lshr_b32 s62, s2, 4\ns_lshl_b32 s62, s62, 15\ns_and_b32 s63, s2, 15\ns_lshl_b32 s63, s63, 6\ns_add_u32 s62, s62, s63\ns_add_u32 s63, s62, 4096')
    for j in range(8):
        a.e(f'buffer_load_dword v{WOR+j}, v3, s[28:31], s{62+j//4} offen offset:{(j%4)*1024}')
    a.e('A_nowo1:')
    a.e('s_lshl_b32 s42, s37, 15\ns_lshl_b32 s43, s36, 12\ns_add_u32 s42, s42, s43')
    for r in range(4):
        a.e(f'buffer_load_dwordx4 {vr(X+4*r,4)}, v2, s[16:19], s42 offen offset:{r*1024}')
    a.e('s_lshl_b32 s44, s61, 18\ns_lshl_b32 s45, s38, 8\ns_add_u32 s44, s44, s45\ns_lshl_b32 s45, s60, 6\ns_add_u32 s44, s44, s45')
    def wq_loads(s0, s1):
        for s in range(s0, s1):
            for jh in range(2):
                a.e(f's_add_u32 s45, s44, {(32*s+4*jh)*1024}')
                for j in range(4):
                    a.e(f'buffer_load_dword v{W+8*s+4*jh+j}, v3, s[20:23], s45 offen offset:{j*1024}')
    wq_loads(0, 5)
    a.e('s_lshl_b32 s46, s36, 11')
    for sp in range(2):
        for j in range(8):
            a.e(f'buffer_load_ushort v{KVR+8*sp+j}, v4, s[24:27], s46 offen offset:{sp*1024+j*32}')
    a.e('s_waitcnt vmcnt(56)')
    for r in range(4): unpack(a, D+8*r, X+4*r, 4)
    for r in range(4):
        d = D+8*r; t = TMP+4*r
        a.e(f'v_pk_add_f32 {vr(t,2)}, {vr(d,2)}, {vr(d+2,2)}\nv_pk_add_f32 {vr(t+2,2)}, {vr(d+4,2)}, {vr(d+6,2)}')
    for r in range(4):
        t = TMP+4*r
        a.e(f'v_pk_add_f32 {vr(t,2)}, {vr(t,2)}, {vr(t+2,2)}')
    for r in range(4):
        t = TMP+4*r
        a.e(f'v_add_f32 v{t}, v{t}, v{t+1}')
    def red4():
        t0, t1, t2, t3 = TMP, TMP+4, TMP+8, TMP+12
        a.e(f'v_permlane32_swap_b32 v{t0}, v{t1}\nv_permlane32_swap_b32 v{t2}, v{t3}')
        a.e(f'v_add_f32 v{t0}, v{t0}, v{t1}\nv_add_f32 v{t2}, v{t2}, v{t3}')
        a.e(f'v_permlane16_swap_b32 v{t0}, v{t2}\nv_add_f32 v{t0}, v{t0}, v{t2}')
        row16_sum(a, t0)
    red4()
    LN = [0, 32, 16, 48]
    a.e(f'v_mul_f32 v{TMP}, {f2u(1/512):#x}, v{TMP}     ; mean')
    rnd_bf16(a, TMP+1, TMP)
    a.e(f'v_sub_f32 v7, v{TMP}, v{TMP+1}')
    for r in range(4): a.e(f'v_readlane_b32 s{64+2*r}, v{TMP+1}, {LN[r]}')
    wq_loads(5, 8)
    for r in range(4):
        for p in range(4):
            d = D+8*r+2*p
            a.e(f'v_pk_add_f32 {vr(d,2)}, {vr(d,2)}, s[{64+2*r}:{65+2*r}] op_sel_hi:[1,0] neg_lo:[0,1] neg_hi:[0,1]')
    for r in range(4):
        d = D+8*r; t = TMP+4*r
        a.e(f'v_pk_mul_f32 {vr(t,2)}, {vr(d,2)}, {vr(d,2)}')
    for p in range(1, 4):
        for r in range(4):
            d = D+8*r+2*p; t = TMP+4*r
            a.e(f'v_pk_fma_f32 {vr(t,2)}, {vr(d,2)}, {vr(d,2)}, {vr(t,2)}')
    for r in range(4):
        t = TMP+4*r
        a.e(f'v_add_f32 v{t}, v{t}, v{t+1}')
    red4()
    a.e(f'v_mul_f32 v{TMP}, {f2u(1/512):#x}, v{TMP}')
    a.e(f'v_fma_f32 v{TMP}, -v7, v7, v{TMP}       ; var')
    rnd_bf16(a, TMP, TMP)
    a.e(f'v_add_f32 v{TMP}, {f2u(1e-5):#x}, v{TMP}')
    rnd_bf16(a, TMP, TMP)
    a.e(f'v_sqrt_f32 v{TMP}, v{TMP}')
    rnd_bf16(a, TMP, TMP)
    a.e(f'v_rcp_f32 v{TMP}, v{TMP}')
    for r in range(4): pack(a, X+4*r, D+8*r, 4)
    for r in range(4): a.e(f'v_readlane_b32 s{64+2*r}, v{TMP}, {LN[r]}')
    for r in range(4): unpack(a, D+8*r, X+4*r, 4)
    a.e(f's_mul_i32 s47, s36, {4*A_XROW}\nv_add_u32 v7, s47, v2')
    for r in range(4):
        for p in range(4):
            d = D+8*r+2*p
            a.e(f'v_pk_mul_f32 {vr(d,2)}, {vr(d,2)}, s[{64+2*r}:{65+2*r}] op_sel_hi:[1,0]')
        pack(a, X+4*r, D+8*r, 4)
        a.e(f'ds_write_b128 v7, {vr(X+4*r,4)} offset:{r*A_XROW}')
    a.e(f'v_mul_u32_u24 v7, {A_XROW}, v5\nv_lshl_add_u32 v7, v6, 4, v7          ; i*1040 + g*16')
    a.e(f's_mul_i32 s47, s61, {16*A_XROW+512}')
    a.e(f's_mul_i32 s48, s61, {16*A_XROW-512}\ns_sub_u32 s48, {16*A_XROW}, s48')
    a.e(f's_and_b32 s49, s38, 1\ns_mul_i32 s49, s49, {16*A_XROW}\ns_lshl_b32 s50, s36, 7\ns_add_u32 s49, s49, s50')
    a.e(f'v_add_u32 v{TMP+4}, s47, v7\nv_add_u32 v{TMP+5}, s48, v7\nv_add_u32 v{TMP+6}, s49, v7')
    def perms(dst, src, both=True):
        for p in range(4):
            a.e(f'v_perm_b32 v{dst+p}, v{src+2*p+1}, v{src+2*p}, s40')
        if both:
            for p in range(4):
                a.e(f'v_perm_b32 v{dst+4+p}, v{src+2*p+1}, v{src+2*p}, s41')
    a.e('s_waitcnt vmcnt(24)')
    for s in range(5): perms(T+8*s, W+8*s)
    perms(KVF, KVR, False); perms(KVF+4, KVR+8, False)
    a.e('s_waitcnt lgkmcnt(0)\ns_barrier')
    for s in range(8):
        a.e(f'ds_read_b128 {vr(XF+8*s,4)}, v{TMP+4} offset:{s*64}\nds_read_b128 {vr(XF+8*s+4,4)}, v{TMP+5} offset:{s*64}')
        if s == 5:
            pass
    a.e(f'ds_read_b128 {vr(XKV,4)}, v{TMP+6}\nds_read_b128 {vr(XKV+4,4)}, v{TMP+6} offset:64')
    a.e('s_waitcnt vmcnt(0)')
    for s in range(5, 8): perms(T+8*s, W+8*s)
    ACC = 8; ACCKV = 24; EXR = 28
    for s in range(8):
        left = 18 - 2*(s+1)
        a.e(f's_waitcnt lgkmcnt({min(left,15)})')
        for tl in range(2):
            for e in range(2):
                acc = ACC + (tl*2+e)*4
                c = '0' if s == 0 else vr(acc,4)
                a.e(f'v_mfma_f32_16x16x32_bf16 {vr(acc,4)}, {vr(T+8*s+4*e,4)}, {vr(XF+8*s+4*tl,4)}, {c}')
    a.e('s_waitcnt lgkmcnt(0)')
    a.e('s_cmp_lt_u32 s38, 2\ns_cbranch_scc0 A_v')
    a.e(f'v_mfma_f32_16x16x32_bf16 {vr(ACCKV,4)}, {vr(KVF,4)}, {vr(XKV,4)}, 0')
    a.e(f'v_mfma_f32_16x16x32_bf16 {vr(ACCKV,4)}, {vr(KVF+4,4)}, {vr(XKV+4,4)}, {vr(ACCKV,4)}')
    a.e('s_branch A_kvj\nA_v:')
    a.e(f'v_mfma_f32_16x16x32_bf16 {vr(ACCKV,4)}, {vr(XKV,4)}, {vr(KVF,4)}, 0')
    a.e(f'v_mfma_f32_16x16x32_bf16 {vr(ACCKV,4)}, {vr(XKV+4,4)}, {vr(KVF+4,4)}, {vr(ACCKV,4)}')
    a.e('A_kvj:')
    a.e(f's_lshl_b32 s47, s36, 11\ns_xor_b32 s48, s47, 8192\ns_lshl_b32 s49, s36, 10')
    a.e(f'v_add_u32 v{TMP+4}, s47, v2\nv_add_u32 v{TMP+5}, s48, v2\nv_add_u32 v{TMP+6}, s49, v2')
    a.e('s_nop 4')
    a.e(f'ds_write_b128 v{TMP+4}, {vr(ACC+8,4)} offset:{A_EX}\nds_write_b128 v{TMP+4}, {vr(ACC+12,4)} offset:{A_EX+1024}')
    a.e(f'ds_write_b128 v{TMP+6}, {vr(ACCKV,4)} offset:{A_KV}')
    a.e('s_cmp_lg_u32 s36, 7\ns_cbranch_scc1 A_nowo2')
    perms(WOF_, WOR)
    a.e('s_lshr_b32 s62, s2, 5\ns_lshl_b32 s62, s62, 16\ns_bfe_u32 s63, s2, 0x30001\ns_lshl_b32 s63, s63, 13\ns_add_u32 s62, s62, s63')
    a.e('s_bfe_u32 s63, s2, 0x10004\ns_lshl_b32 s63, s63, 12\ns_add_u32 s62, s62, s63\ns_and_b32 s63, s2, 1\ns_lshl_b32 s63, s63, 11\ns_add_u32 s62, s62, s63')
    a.e(f's_add_u32 s62, s62, {WS_WOF:#x}')
    a.e(f'buffer_store_dwordx4 {vr(WOF_,4)}, v2, s[32:35], s62 offen\nbuffer_store_dwordx4 {vr(WOF_+4,4)}, v2, s[32:35], s62 offen offset:1024')
    a.e('A_nowo2:')
    a.e('s_waitcnt lgkmcnt(0)\ns_barrier')
    a.e(f'ds_read_b128 {vr(EXR,4)}, v{TMP+5} offset:{A_EX}\nds_read_b128 {vr(EXR+4,4)}, v{TMP+5} offset:{A_EX+1024}')
    a.e('s_cmp_lg_u32 s36, 0\ns_cbranch_scc1 A_nokv1')
    for w in range(8):
        a.e(f'ds_read_b128 {vr(XF+4*w,4)}, v2 offset:{A_KV+w*1024}')
    a.e('A_nokv1:')
    a.e('v_lshlrev_b32 v7, 10, v5\nv_lshl_add_u32 v7, v6, 4, v7       ; n*1024 + g*16')
    a.e('s_lshl_b32 s47, s37, 15\ns_lshl_b32 s48, s61, 14\ns_add_u32 s47, s47, s48\ns_lshl_b32 s48, s38, 8\ns_add_u32 s47, s47, s48\ns_lshl_b32 s48, s60, 6\ns_add_u32 s47, s47, s48')
    if WS_Q: a.e(f's_add_u32 s47, s47, {WS_Q:#x}')
    a.e(f's_mov_b32 s64, {f2u(QSCALE):#x}')
    a.e('s_waitcnt lgkmcnt(0)')
    for p in range(4):
        a.e(f'v_pk_add_f32 {vr(ACC+2*p,2)}, {vr(ACC+2*p,2)}, {vr(EXR+2*p,2)}')
    for r in range(4):
        a.e(f'v_cvt_pk_bf16_f32 v{EXR+r}, v{ACC+r}, v{ACC+4+r}')
    unpack(a, ACC, EXR, 4)
    for p in range(4):
        a.e(f'v_pk_mul_f32 {vr(ACC+2*p,2)}, {vr(ACC+2*p,2)}, s[64:65] op_sel_hi:[1,0]')
    pack(a, EXR, ACC, 4)
    a.e(f'buffer_store_dwordx4 {vr(EXR,4)}, v7, s[32:35], s47 offen')
    a.e('s_cmp_lg_u32 s36, 0\ns_cbranch_scc1 A_done')
    for st in (4, 2, 1):
        for w in range(st):
            for p in range(2):
                a.e(f'v_pk_add_f32 {vr(XF+4*w+2*p,2)}, {vr(XF+4*w+2*p,2)}, {vr(XF+4*(w+st)+2*p,2)}')
    pack(a, XF+4, XF, 2)
    a.e('v_lshlrev_b32 v7, 5, v5\nv_lshl_add_u32 v7, v6, 3, v7       ; (l%16)*32 + g*8')
    a.e('s_lshl_b32 s47, s37, 1\ns_and_b32 s48, s38, 1\ns_add_u32 s47, s47, s48')
    a.e(f's_mul_i32 s48, s47, 544\ns_add_u32 s48, s48, {WS_VT:#x}\ns_lshl_b32 s47, s47, 9\ns_add_u32 s47, s47, {WS_K:#x}')
    a.e('s_cmp_lt_u32 s38, 2\ns_cselect_b32 s47, s47, s48')
    a.e(f'buffer_store_dwordx2 {vr(XF+4,2)}, v7, s[32:35], s47 offen')
    a.e('s_cbranch_scc1 A_done')
    a.e(f'v_mov_b32 v{XF}, 0x3f803f80\nv_lshlrev_b32 v7, 2, v1\ns_mov_b64 exec, 0xff')
    a.e(f'buffer_store_dword v{XF}, v7, s[32:35], s47 offen offset:512')
    a.e('A_done:\ns_endpgm')
    return a.L

B_SUM, B_M0, B_O, B_Q, B_FLAG, B_WO = 0, 18432, 20480, 22528, 30720, 31744
B_LDS = B_WO + 131072
B_AROW = 1040

def gen_b():
    a = Asm()
    vL4, vL16, vM0, vOw, vN, vOr, vWO, vIDX, vT0, vT1 = 2, 3, 4, 5, 6, 7, 8, 9, 10, 11
    CHK0, CHK1, NT = 12, 13, 14
    K, V = 16, 48
    Q, Z, C, SA, SB, OA, OB, OUT, WOT, OF, XR, WR = 112, 116, 120, 136, 152, 168, 184, 200, 216, 232, 240, 244
    NV = 248
    a.e('s_cmp_ge_u32 s2, 256\ns_cbranch_scc1 B_done')
    a.e('s_load_dwordx2 s[10:11], s[0:1], 96\ns_load_dwordx2 s[4:5], s[0:1], 0\ns_load_dwordx2 s[6:7], s[0:1], 48\ns_load_dwordx2 s[8:9], s[0:1], 80')
    a.e('v_lshrrev_b32 v1, 6, v0\nv_readfirstlane_b32 s32, v1\nv_and_b32 v1, 63, v0')
    a.e(f'v_lshlrev_b32 v{vL4}, 2, v1\nv_lshlrev_b32 v{vL16}, 4, v1')
    n, h2 = SA, SA+1
    a.e(f'v_and_b32 v{n}, 31, v1\nv_lshrrev_b32 v{h2}, 5, v1')
    a.e(f'v_lshrrev_b32 v{SB}, 2, v{n}\nv_lshlrev_b32 v{SB}, 10, v{SB}\nv_and_b32 v{vT0}, 3, v{n}\nv_lshl_add_u32 v{SB}, v{vT0}, 5, v{SB}\nv_lshl_add_u32 v{SB}, v{h2}, 4, v{SB}')
    a.e(f'v_lshlrev_b32 v{SB+1}, 5, v{n}\nv_lshl_add_u32 v{SB+1}, v{h2}, 4, v{SB+1}')
    a.e(f'v_and_b32 v{vT0}, 27, v{n}\nv_cmp_eq_u32 vcc, 16, v{vT0}\nv_mov_b32 v{vT1}, 0x40000000\nv_lshlrev_b32 v{vT0}, 4, v{h2}\nv_add_u32 v{vT0}, 512, v{vT0}')
    a.e(f'v_cndmask_b32 v{vT1}, v{vT1}, v{vT0}, vcc\nv_cmp_gt_u32 vcc, 16, v{n}\nv_cndmask_b32 v{SB+2}, v{vT1}, v{SB+1}, vcc')
    a.e('s_waitcnt lgkmcnt(0)')
    srd(a, 28, 10, WS_SIZE)
    a.e(f's_lshl_b32 s34, s2, 13\ns_lshl_b32 s35, s32, 7\ns_add_u32 s35, s35, s34')
    if WS_Q: a.e(f's_add_u32 s35, s35, {WS_Q:#x}')
    a.e(f'buffer_load_dwordx4 {vr(Q,4)}, v{SB}, s[28:31], s35 offen')
    a.e(f's_lshl_b32 s36, s32, 13\ns_add_u32 s36, s36, {WS_K:#x}\ns_add_u32 s37, s36, 4096')
    a.e(f's_mul_i32 s38, s32, 8704\ns_add_u32 s38, s38, {WS_VT:#x}\ns_add_u32 s39, s38, {8*544}')
    order = []
    def ldK(kt):
        a.e(f'buffer_load_dwordx4 {vr(K+4*kt,4)}, v{SB+1}, s[28:31], s{36+kt//4} offen offset:{(kt%4)*1024}'); order.append(('K', kt))
    def ldV(bl):
        a.e(f'buffer_load_dwordx4 {vr(V+4*bl,4)}, v{SB+2}, s[28:31], s{38+bl//8} offen offset:{(bl%8)*544}'); order.append(('V', bl))
    order.append(('Q', 0))
    ldK(0); ldK(1); ldV(0); ldV(1); ldV(2); ldV(3)
    for kt in range(2, 8): ldK(kt); ldV(2*kt); ldV(2*kt+1)
    srd(a, 16, 4, 2097152); srd(a, 20, 6, 1024); srd(a, 24, 8, 2097152)
    a.e(f's_lshl_b32 s40, s32, 10\ns_add_u32 s40, s40, s34')
    a.e(f'buffer_load_dwordx4 {vr(XR,4)}, v{vL16}, s[16:19], s40 offen'); order.append(('X', 0))
    a.e(f'buffer_load_dwordx4 {vr(WR,4)}, v{vL16}, s[20:23], 0 offen'); order.append(('W', 0))
    a.e(f's_lshl_b32 s41, s32, 13\ns_add_u32 s41, s41, {WS_WOF:#x}\ns_lshl_b32 s42, s32, 14\ns_add_u32 s42, s42, {B_WO}')
    def dma(t):
        L = []
        for hf in range(2):
            L.append(f's_add_u32 m0, s42, {(t%2)*8192 + hf*4096}')
            L.append(f's_add_u32 s43, s41, {t*65536 + hf*4096}')
            for f in range(4):
                L.append(f'buffer_load_dwordx4 v{vL16}, s[28:31], s43 offen offset:{f*1024} lds')
        return L
    a.e('s_mov_b32 s33, 0')
    a.e(f'v_lshlrev_b32 v{vM0}, 3, v{n}\nv_add_u32 v{vM0}, {B_M0}, v{vM0}')
    a.e(f's_and_b32 s44, s32, 3\ns_lshr_b32 s45, s44, 1\ns_lshl_b32 s45, s45, 4\ns_and_b32 s46, s44, 1\ns_lshl_b32 s46, s46, 2\ns_add_u32 s45, s45, s46')
    a.e(f'v_lshlrev_b32 v{vOw}, 5, v{n}\nv_lshl_add_u32 v{vOw}, v{h2}, 3, v{vOw}\nv_add_u32 v{vOw}, s45, v{vOw}')
    a.e(f's_lshl_b32 s45, s44, 9\nv_add_u32 v{vN}, s45, v{vL4}')
    a.e(f'v_and_b32 v{vOr}, 7, v1\nv_lshlrev_b32 v{vOr}, 7, v{vOr}\nv_lshrrev_b32 v{vT0}, 4, v1\nv_lshl_add_u32 v{vOr}, v{vT0}, 4, v{vOr}')
    a.e(f'v_add_u32 v{vWO}, s42, v{vL16}')
    a.e(f'v_mov_b32 v{vIDX}, 0xdddd')
    for i in range(4): a.e(f'v_mov_b32 v{Z+i}, 0')
    a.e(f's_mul_i32 s47, s32, 2304\ns_lshl_b32 s48, s32, 10\ns_lshl_b32 s49, s32, 8')
    def zero_sums():
        a.e(f'v_add_u32 v{vT0}, s47, v{vL16}\nv_add_u32 v{vT1}, s47, v{vL4}')
        a.e(f'ds_write_b128 v{vT0}, {vr(Z,4)} offset:{B_SUM}\nds_write_b128 v{vT0}, {vr(Z,4)} offset:{B_SUM+1024}\nds_write_b32 v{vT1}, v{Z} offset:{B_SUM+2048}')
        a.e(f'ds_write_b32 v{vL4}, v{Z} offset:{B_FLAG}')
    zero_sums()
    for l in dma(0) + dma(1): a.e(l)
    NLD = len(order) + 16
    def wv(kind, idx): return f's_waitcnt vmcnt({NLD - 1 - order.index((kind, idx))})'
    a.e(wv('K', 1))
    a.e(f'v_mfma_f32_32x32x16_bf16 {vr(SA,16)}, {vr(K,4)}, {vr(Q,4)}, 0')
    a.e(f'v_mfma_f32_32x32x16_bf16 {vr(SB,16)}, {vr(K+4,4)}, {vr(Q,4)}, 0')
    a.e(f'v_add_u32 v{vT0}, s48, v{vL16}\nds_write_b128 v{vT0}, {vr(Q,4)} offset:{B_Q}')
    def maxtree(dst, bases, first):
        regs = [b+i for b in bases for i in range(16)]
        if first:
            a.e(f'v_max_f32 v{dst}, v{regs[0]}, v{regs[1]}'); regs = regs[2:]
        for i in range(0, len(regs), 2):
            a.e(f'v_max3_f32 v{dst}, v{dst}, v{regs[i]}, v{regs[i+1]}')
    maxtree(NT, [SA], True); maxtree(NT+1, [SB], True)
    a.e(f'v_max_f32 v{NT}, v{NT}, v{NT+1}\nv_mov_b32 v{NT+1}, v{NT}\nv_permlane32_swap_b32 v{NT}, v{NT+1}\nv_max_f32 v{NT}, v{NT}, v{NT+1}')
    a.e(f'v_sub_f32 v{NT}, {f2u(-MARGIN):#x}, v{NT}\nv_mov_b32 v{NT+1}, v{NT}')
    a.e(f'v_add_u32 v{vT0}, s49, v{vM0}\nds_write_b64 v{vT0}, {vr(NT,2)}')
    a.e('B_start:')
    a.e(f'v_mov_b32 v{CHK0}, 0\nv_mov_b32 v{CHK1}, 0x7f800000')
    a.e(f'v_mfma_f32_32x32x16_bf16 {vr(OA,16)}, {vr(Z,4)}, {vr(Z,4)}, 0\nv_mfma_f32_32x32x16_bf16 {vr(OB,16)}, {vr(Z,4)}, {vr(Z,4)}, 0')
    a.e('s_waitcnt lgkmcnt(0)\ns_barrier')
    def ldCQ(u):
        L = [f'ds_read_b128 {vr(Q,4)}, v{vL16} offset:{B_Q+u*1024}']
        for i in range(4):
            L.append(f'ds_read2_b64 {vr(C+4*i,4)}, v{vM0} offset0:{u*32} offset1:{u*32}')
        return L
    def QK(kt): return f'v_mfma_f32_32x32x16_bf16 {vr(SA if kt%2==0 else SB,16)}, {vr(K+4*kt,4)}, {vr(Q,4)}, {vr(C,16)}'
    def PV(u, kt, hf):
        s = (SA if kt%2==0 else SB) + 8*hf
        return f'v_smfmac_f32_32x32x32_bf16 {vr(OA if u%2==0 else OB,16)}, {vr(V+8*kt+4*hf,4)}, {vr(s,8)}, v{vIDX}'
    def adds(u):
        o = OA if u%2==0 else OB
        return [f'ds_add_f32 v{vL4}, v{o+i} offset:{B_SUM+u*2304+i*256}' for i in range(9)]
    def zero(u):
        return [f'v_mfma_f32_32x32x16_bf16 {vr(OA if u%2==0 else OB,16)}, {vr(Z,4)}, {vr(Z,4)}, 0']
    lab = [0]
    def role(L):
        lab[0] += 1
        return ['s_cmp_lt_u32 s32, 4', f's_cbranch_scc1 B_r{lab[0]}', '; @opt_begin'] + L + ['; @opt_end', f'B_r{lab[0]}:']
    def norm_rd(u):
        return [f'ds_read2st64_b32 {vr(NT,2)}, v{vN} offset0:{(B_SUM+u*2304)//256} offset1:{(B_SUM+u*2304)//256+1}',
                f'ds_read_b32 v{vT0}, v{vL4} offset:{B_SUM+u*2304+2048}']
    def norm_do(u):
        return [f'v_rcp_f32 v{vT1}, v{vT0}',
                f'v_maximum3_f32 v{CHK0}, v{CHK0}, v{vT0}, |v{NT}|',
                f'v_max_f32 v{vT0}, |v{NT}|, |v{NT+1}|',
                f'v_maximum3_f32 v{CHK0}, v{CHK0}, v{CHK0}, |v{NT+1}|',
                f'v_min_f32 v{CHK1}, v{CHK1}, v{vT0}',
                f'v_mul_f32 v{NT}, v{NT}, v{vT1}', f'v_mul_f32 v{NT+1}, v{NT+1}, v{vT1}',
                f'v_cvt_pk_bf16_f32 v{NT}, v{NT}, v{NT+1}',
                f'ds_write_b32 v{vOw}, v{NT} offset:{B_O+(u%2)*1024}']
    def op_rd_of(t): return [f'ds_read_b128 {vr(OF+4*s,4)}, v{vOr} offset:{B_O+(t%2)*1024+s*64}' for s in range(2)]
    def op_rd_wo(t, s, dst=None):
        dst = WOT if dst is None else dst
        return [f'ds_read_b128 {vr(dst+4*c,4)}, v{vWO} offset:{(t%2)*8192+(s*4+c)*1024}' for c in range(4)]
    def op_mm(t, s, src=None):
        src = WOT if src is None else src
        return [f'v_mfma_f32_16x16x32_bf16 {vr(OUT+4*c,4)}, {vr(src+4*c,4)}, {vr(OF+4*s,4)}, ' + ('0' if (t == 0 and s == 0) else vr(OUT+4*c,4)) for c in range(4)]
    for l in ldCQ(0): a.e(l)
    a.e('s_waitcnt lgkmcnt(0)')
    a.e(QK(0))
    LG0 = 's_waitcnt lgkmcnt(0)'
    for u in range(8):
        for kt in range(8):
            inj = {p: [] for p in range(17)}
            cur = SA if kt%2==0 else SB
            first = (u == 0)
            if kt > 0: inj[2] += ([wv('V', 2*kt-1)] if first else []) + [PV(u, kt-1, 1)]
            elif u > 0: inj[2] += [PV(u-1, 7, 1)]
            if kt < 7: inj[5] += ([wv('K', kt+1)] if first else []) + [QK(kt+1)]
            elif u < 7: inj[5] += [LG0, QK(0)]
            inj[10] += ([wv('V', 2*kt)] if first else []) + [PV(u, kt, 0)]
            if u > 0:
                if kt == 0:
                    ad = adds(u-1); inj[13] += ad[0:3]; inj[14] += ad[3:6]; inj[15] += ad[6:9]
                if kt == 1: inj[16] += [LG0, 's_barrier']
                if kt == 2:
                    inj[0] += role(norm_rd(u-1))
                    inj[13] += zero(u-1)
                if kt == 3: inj[0] += [LG0] + role(norm_do(u-1))
            if u > 1:
                t = u-2
                if kt == 2: inj[1] += ['s_waitcnt vmcnt(8)'] + op_rd_of(t) + op_rd_wo(t, 0)
                if kt == 3:
                    mm = op_mm(t, 0); inj[7] += mm[0:1]; inj[8] += mm[1:2]; inj[12] += mm[2:3]; inj[14] += mm[3:4]
                if kt == 4: inj[0] += op_rd_wo(t, 1)
                if kt == 5:
                    mm = op_mm(t, 1); inj[0] += [LG0]; inj[7] += mm[0:1]; inj[8] += mm[1:2]; inj[12] += mm[2:3]; inj[14] += mm[3:4]
                if kt == 6:
                    d = dma(u); inj[0] += d[0:6]; inj[7] += d[6:12]
            if kt == 6 and u < 7: inj[13] += ldCQ(u+1)
            a.c(f'tile u={u} kt={kt}')
            for p in range(17):
                for l in inj[p]: a.e(l)
                if p < 16: a.e(f'v_exp_f32 v{cur+p}, v{cur+p}')
    a.c('tail')
    a.e(PV(7, 7, 1))
    a.e('s_waitcnt vmcnt(8)')
    for l in op_rd_wo(6, 0) + op_rd_wo(6, 1, SA): a.e(l)
    for l in adds(7): a.e(l)
    a.e(LG0); a.e('s_barrier')
    for l in role(norm_rd(7)) + op_rd_of(6): a.e(l)
    a.e(LG0)
    chk = [f'v_mov_b32 v{vT0}, 0x7f800000', f'v_cmp_lt_f32 vcc, v{CHK0}, v{vT0}', f'v_mov_b32 v{vT0}, {f2u(2.0**-105):#x}', f'v_cmp_ge_f32 s[50:51], v{CHK1}, v{vT0}',
           's_and_b64 vcc, vcc, s[50:51]', 's_cmp_eq_u64 vcc, -1', 's_cbranch_scc1 B_ok1', f'v_mov_b32 v{vT0}, 1', f'ds_write_b32 v{vL4}, v{vT0} offset:{B_FLAG}', 'B_ok1:']
    for l in role(norm_do(7) + chk): a.e(l)
    for l in op_mm(6, 0) + op_mm(6, 1, SA): a.e(l)
    a.e('s_waitcnt vmcnt(0)')
    for l in op_rd_wo(7, 0, SB) + op_rd_wo(7, 1, C): a.e(l)
    a.e(LG0); a.e('s_barrier')
    a.e(f'ds_read_b32 v{vT0}, v{vL4} offset:{B_FLAG}')
    for l in op_rd_of(7): a.e(l)
    a.e(LG0)
    a.e(f'v_readfirstlane_b32 s50, v{vT0}')
    for l in op_mm(7, 0, SB) + op_mm(7, 1, C): a.e(l)
    a.e('s_cmp_gt_u32 s50, s33\ns_cbranch_scc1 B_redo')
    a.e(f'v_and_b32 v{vT0}, 15, v1\nv_mul_u32_u24 v{vT0}, {B_AROW}, v{vT0}\nv_lshrrev_b32 v{vT1}, 4, v1\nv_lshl_add_u32 v{vT0}, v{vT1}, 4, v{vT0}\ns_lshl_b32 s50, s32, 7\nv_add_u32 v{vT0}, s50, v{vT0}')
    a.e(f's_mul_i32 s50, s32, {B_AROW}\nv_add_u32 v{vT1}, s50, v{vL16}')
    XFL, WF, HF, DD, P = K, K+8, K+16, K+24, V
    unpack(a, XFL, XR, 4); unpack(a, WF, WR, 4)
    for hh in range(2):
        for r in range(4):
            a.e(f'v_cvt_pk_bf16_f32 v{P+4*hh+r}, v{OUT+8*hh+r}, v{OUT+8*hh+4+r}')
        a.e(f'ds_write_b128 v{vT0}, {vr(P+4*hh,4)} offset:{B_SUM+64*hh}')
    a.e(LG0); a.e('s_barrier')
    a.e(f'ds_read_b128 {vr(P,4)}, v{vT1} offset:{B_SUM}')
    a.e(LG0)
    unpack(a, HF, P, 4)
    for p in range(4): a.e(f'v_pk_add_f32 {vr(HF+2*p,2)}, {vr(HF+2*p,2)}, {vr(XFL+2*p,2)}')
    HP, NP, OP, T4 = V+8, V+12, V+16, V+20
    pack(a, HP, HF, 4)
    unpack(a, HF, HP, 4)
    a.e(f's_add_u32 s50, s40, {WS_H:#x}\nbuffer_store_dwordx4 {vr(HP,4)}, v{vL16}, s[28:31], s50 offen')
    def wsum(v, sdst):
        row16_sum(a, v)
        a.e(f'v_add_f32_dpp v{v}, v{v}, v{v} row_bcast:15 row_mask:0xa bank_mask:0xf')
        a.e(f'v_add_f32_dpp v{v}, v{v}, v{v} row_bcast:31 row_mask:0xc bank_mask:0xf')
        a.e(f'v_readlane_b32 s{sdst}, v{v}, 63')
    a.e(f'v_pk_add_f32 {vr(T4,2)}, {vr(HF,2)}, {vr(HF+2,2)}\nv_pk_add_f32 {vr(T4+2,2)}, {vr(HF+4,2)}, {vr(HF+6,2)}\nv_pk_add_f32 {vr(T4,2)}, {vr(T4,2)}, {vr(T4+2,2)}\nv_add_f32 v{T4}, v{T4}, v{T4+1}')
    wsum(T4, 52)
    a.e(f'v_mov_b32 v{T4}, {f2u(1/512):#x}\nv_mul_f32 v{T4}, s52, v{T4}')
    rnd_bf16(a, T4+4, T4)
    a.e(f'v_sub_f32 v{T4+6}, v{T4}, v{T4+4}')
    for p in range(4):
        a.e(f'v_pk_add_f32 {vr(DD+2*p,2)}, {vr(HF+2*p,2)}, {vr(T4+4,2)} op_sel_hi:[1,0] neg_lo:[0,1] neg_hi:[0,1]')
    a.e(f'v_pk_mul_f32 {vr(T4,2)}, {vr(DD,2)}, {vr(DD,2)}')
    for p in range(1, 4): a.e(f'v_pk_fma_f32 {vr(T4,2)}, {vr(DD+2*p,2)}, {vr(DD+2*p,2)}, {vr(T4,2)}')
    a.e(f'v_add_f32 v{T4}, v{T4}, v{T4+1}')
    pack(a, NP, DD, 4)
    wsum(T4, 52)
    unpack(a, DD, NP, 4)
    a.e(f'v_mov_b32 v{T4}, {f2u(1/512):#x}\nv_mul_f32 v{T4}, s52, v{T4}\nv_fma_f32 v{T4}, -v{T4+6}, v{T4+6}, v{T4}')
    rnd_bf16(a, T4, T4)
    a.e(f'v_add_f32 v{T4}, {f2u(1e-5):#x}, v{T4}')
    rnd_bf16(a, T4, T4)
    a.e(f'v_sqrt_f32 v{T4}, v{T4}')
    rnd_bf16(a, T4, T4)
    a.e(f'v_rcp_f32 v{T4}, v{T4}')
    for p in range(4): a.e(f'v_pk_mul_f32 {vr(DD+2*p,2)}, {vr(DD+2*p,2)}, {vr(T4,2)} op_sel_hi:[1,0]')
    pack(a, NP, DD, 4)
    unpack(a, DD, NP, 4)
    a.e(f's_add_u32 s50, s40, {WS_HN:#x}\nbuffer_store_dwordx4 {vr(NP,4)}, v{vL16}, s[28:31], s50 offen')
    a.e(f'v_pk_mul_f32 {vr(T4,2)}, {vr(DD,2)}, {vr(WF,2)}')
    for p in range(1, 4): a.e(f'v_pk_fma_f32 {vr(T4,2)}, {vr(DD+2*p,2)}, {vr(WF+2*p,2)}, {vr(T4,2)}')
    a.e(f'v_add_f32 v{T4}, v{T4}, v{T4+1}')
    for p in range(4): a.e(f'v_pk_add_f32 {vr(HF+2*p,2)}, {vr(HF+2*p,2)}, {vr(DD+2*p,2)}')
    pack(a, OP, HF, 4)
    a.e(f'buffer_store_dwordx4 {vr(OP,4)}, v{vL16}, s[24:27], s40 offen')
    wsum(T4, 52)
    a.e(f'v_mov_b32 v{T4}, s52')
    rnd_bf16(a, T4, T4)
    a.e(f'v_ashrrev_i32 v{T4+1}, 31, v{T4}\nv_or_b32 v{T4+1}, 0x80000000, v{T4+1}\nv_xor_b32 v{T4}, v{T4}, v{T4+1}\nv_and_b32 v{T4}, 0xffff0000, v{T4}')
    a.e(f's_lshr_b32 s50, s40, 10\ns_sub_u32 s51, 0xffff, s50\nv_or_b32 v{T4}, s51, v{T4}\ns_lshl_b32 s50, s50, 2\ns_add_u32 s50, s50, {WS_KEY:#x}')
    a.e(f's_mov_b64 exec, 1\nbuffer_store_dword v{T4}, off, s[28:31], s50')
    a.e('B_done:\ns_endpgm')
    a.e('B_redo:')
    a.e('s_mov_b32 s33, 1\ns_nop 7\ns_barrier')
    zero_sums()
    a.e(f'v_mov_b32 v{NT}, 0x7f800000\nv_mov_b32 v{NT+1}, 0x7f800000\nv_add_u32 v{vT0}, s49, v{vM0}\nds_write_b64 v{vT0}, {vr(NT,2)}')
    for l in dma(0) + dma(1): a.e(l)
    a.e(LG0); a.e('s_barrier')
    a.e(f's_mov_b32 s50, 0\nv_mov_b32 v{vT0}, v{vL16}\nv_mov_b32 v{vT1}, v{vM0}')
    a.e('B_mx:')
    a.e(f'ds_read_b128 {vr(Q,4)}, v{vT0} offset:{B_Q}'); a.e(LG0)
    for kt in range(8):
        a.e(f'v_mfma_f32_32x32x16_bf16 {vr(SA,16)}, {vr(K+4*kt,4)}, {vr(Q,4)}, 0')
        maxtree(NT, [SA], kt == 0)
    a.e(f'v_sub_f32 v{NT}, 0, v{NT}')
    a.e(f'ds_min_f32 v{vT1}, v{NT}\nds_min_f32 v{vT1}, v{NT} offset:4')
    a.e(f'v_add_u32 v{vT0}, 1024, v{vT0}\nv_add_u32 v{vT1}, 256, v{vT1}')
    a.e('s_add_u32 s50, s50, 1\ns_cmp_lt_u32 s50, 8\ns_cbranch_scc1 B_mx')
    a.e('s_nop 7\ns_branch B_start')
    return a.L, NV

def top2_wave(a, KR, m1, m2, t0, t1):
    a.e(f'v_max_u32 v{m1}, v{KR}, v{KR+1}\nv_min_u32 v{m2}, v{KR}, v{KR+1}')
    for i in range(2, 32, 2):
        a.e(f'v_med3_u32 v{t0}, v{m1}, v{KR+i}, v{KR+i+1}\nv_max3_u32 v{m1}, v{m1}, v{KR+i}, v{KR+i+1}\nv_max_u32 v{m2}, v{m2}, v{t0}')
    for mod in ['row_ror:8 row_mask:0xf', 'row_ror:4 row_mask:0xf', 'row_ror:2 row_mask:0xf', 'row_ror:1 row_mask:0xf', 'row_bcast:15 row_mask:0xa', 'row_bcast:31 row_mask:0xc']:
        a.e(f'v_mov_b32 v{t0}, 0')
        a.e(f'v_min_u32_dpp v{t0}, v{m1}, v{m1} {mod} bank_mask:0xf')
        a.e(f'v_max_u32_dpp v{m2}, v{m2}, v{m2} {mod} bank_mask:0xf')
        a.e(f'v_max_u32_dpp v{m1}, v{m1}, v{m1} {mod} bank_mask:0xf')
        a.e(f'v_max_u32 v{m2}, v{m2}, v{t0}')

def gen_c1():
    a = Asm()
    W, T, KR, XS, ACC = 40, 32, 72, 104, 8
    a.e('s_cmp_ge_u32 s2, 43\ns_cbranch_scc1 C1_done')
    a.e('s_load_dwordx2 s[10:11], s[0:1], 96\ns_load_dwordx4 s[4:7], s[0:1], 56')
    a.e('v_lshrrev_b32 v1, 6, v0\nv_readfirstlane_b32 s32, v1\nv_and_b32 v1, 63, v0')
    a.e('v_lshlrev_b32 v2, 4, v1\nv_and_b32 v5, 15, v1\nv_lshrrev_b32 v6, 4, v1')
    a.e(f'v_mul_u32_u24 v3, {8*2752}, v6\nv_lshl_add_u32 v3, v5, 2, v3')
    a.e('s_mov_b32 s40, 0x05040100\ns_mov_b32 s41, 0x07060302')
    a.e('s_waitcnt lgkmcnt(0)')
    srd(a, 28, 10, WS_SIZE)
    a.e('s_cmp_lg_u32 s32, 0\ns_cbranch_scc1 C1_nk')
    a.e(f's_mov_b32 s34, {WS_KEY:#x}\ns_mov_b32 s35, {WS_KEY+4096:#x}')
    for q in range(8):
        a.e(f'buffer_load_dwordx4 {vr(KR+4*q,4)}, v2, s[28:31], s{34+q//4} offen offset:{(q%4)*1024}')
    a.e('C1_nk:')
    a.e('s_bitcmp1_b32 s32, 0\ns_cselect_b32 s4, s6, s4\ns_cselect_b32 s5, s7, s5')
    srd(a, 20, 4, 512*2752)
    a.e(f's_lshr_b32 s33, s32, 1\ns_mul_i32 s44, s33, {128*2752}\ns_lshl_b32 s45, s2, 6\ns_add_u32 s44, s44, s45')
    for s in range(4):
        for jp in range(4):
            a.e(f's_add_u32 s45, s44, {(32*s+2*jp)*2752}')
            for j in range(2):
                a.e(f'buffer_load_dword v{W+8*s+2*jp+j}, v3, s[20:23], s45 offen offset:{j*2752}')
    a.e('s_cmp_lg_u32 s32, 0\ns_cbranch_scc1 C1_nt')
    a.e('s_waitcnt vmcnt(32)')
    top2_wave(a, KR, 8, 9, 10, 11)
    a.e('v_mov_b32 v10, 0\ns_mov_b32 exec_lo, 0\ns_mov_b32 exec_hi, 0x80000000\nds_write_b64 v10, v[8:9]')
    a.e('s_cmp_lg_u32 s2, 0\ns_cbranch_scc1 C1_ns')
    a.e(f's_mov_b32 s34, {WS_SEL:#x}\nbuffer_store_dwordx2 v[8:9], off, s[28:31], s34')
    a.e('C1_ns:\ns_mov_b64 exec, -1\ns_waitcnt lgkmcnt(0)')
    a.e('C1_nt:\ns_barrier')
    a.e('v_and_b32 v7, 1, v1\nv_lshlrev_b32 v7, 2, v7\nds_read_b32 v7, v7\ns_waitcnt lgkmcnt(0)')
    a.e('v_and_b32 v7, 0xffff, v7\nv_sub_u32 v7, 0xffff, v7\nv_and_b32 v7, 2047, v7\nv_lshlrev_b32 v7, 10, v7\nv_lshl_add_u32 v7, v6, 4, v7')
    a.e(f's_lshl_b32 s34, s33, 8\ns_add_u32 s34, s34, {WS_HN:#x}')
    for s in range(4):
        a.e(f'buffer_load_dwordx4 {vr(XS+4*s,4)}, v7, s[28:31], s34 offen offset:{s*64}')
    a.e('s_waitcnt vmcnt(4)')
    for s in range(4):
        for e in range(2):
            for p in range(4):
                a.e(f'v_perm_b32 v{T+8*s+4*e+p}, v{W+8*s+2*p+1}, v{W+8*s+2*p}, s{40+e}')
    a.e('s_waitcnt vmcnt(0)')
    for s in range(4):
        for e in range(2):
            a.e(f'v_mfma_f32_16x16x32_bf16 {vr(ACC+4*e,4)}, {vr(T+8*s+4*e,4)}, {vr(XS+4*s,4)}, ' + ('0' if s == 0 else vr(ACC+4*e,4)))
    a.e('s_lshl_b32 s34, s32, 8\nv_lshlrev_b32 v7, 7, v5\nv_lshl_add_u32 v7, v6, 4, v7\nv_add_u32 v7, s34, v7')
    a.e('v_cmp_gt_u32 vcc, 2, v5\ns_and_saveexec_b64 s[36:37], vcc')
    a.e(f'ds_write_b128 v7, {vr(ACC,4)} offset:64\nds_write_b128 v7, {vr(ACC+4,4)} offset:128')
    a.e('s_mov_b64 exec, s[36:37]\ns_waitcnt lgkmcnt(0)\ns_barrier')
    a.e('s_cmp_lg_u32 s32, 0\ns_cbranch_scc1 C1_done')
    a.e('v_lshlrev_b32 v7, 2, v1')
    for w in range(8): a.e(f'ds_read_b32 v{16+w}, v7 offset:{64+w*256}')
    a.e(f'v_lshrrev_b32 v8, 5, v1\nv_mul_u32_u24 v8, 2752, v8\nv_lshl_add_u32 v8, v5, 2, v8\nv_and_b32 v9, 1, v6\nv_lshl_add_u32 v8, v9, 1, v8')
    a.e(f's_lshl_b32 s34, s2, 6\ns_add_u32 s34, s34, {WS_ACT:#x}')
    a.e('s_waitcnt lgkmcnt(0)')
    a.e('v_add_f32 v16, v16, v18\nv_add_f32 v17, v17, v19\nv_add_f32 v20, v20, v22\nv_add_f32 v21, v21, v23\nv_add_f32 v16, v16, v20\nv_add_f32 v17, v17, v21')
    rnd_bf16(a, 16, 16); rnd_bf16(a, 17, 17)
    a.e(f'v_mul_f32 v18, {f2u(-L2E):#x}, v16\nv_exp_f32 v18, v18\nv_add_f32 v18, 1.0, v18\nv_rcp_f32 v18, v18\nv_mul_f32 v16, v16, v18')
    rnd_bf16(a, 16, 16)
    a.e('v_mul_f32 v16, v16, v17\nv_cvt_pk_bf16_f32 v16, v16, v16')
    a.e('buffer_store_short v16, v8, s[28:31], s34 offen')
    a.e('C1_done:\ns_endpgm')
    return a.L

def gen_c2():
    a = Asm()
    W, T, XS, ACC = 40, 32, 64, 8
    a.e('s_cmp_ge_u32 s2, 16\ns_cbranch_scc1 C2_done')
    a.e('s_load_dwordx2 s[10:11], s[0:1], 96\ns_load_dwordx4 s[4:7], s[0:1], 72')
    a.e('v_lshrrev_b32 v1, 6, v0\nv_readfirstlane_b32 s32, v1\nv_and_b32 v1, 63, v0')
    a.e('v_and_b32 v5, 15, v1\nv_lshrrev_b32 v6, 4, v1')
    a.e('v_lshlrev_b32 v3, 13, v6\nv_lshl_add_u32 v3, v5, 2, v3')
    a.e('v_and_b32 v7, 1, v1\nv_mul_u32_u24 v7, 2752, v7\nv_lshl_add_u32 v7, v6, 4, v7')
    a.e('s_mov_b32 s40, 0x05040100\ns_mov_b32 s41, 0x07060302')
    a.e('s_waitcnt lgkmcnt(0)')
    srd(a, 28, 10, WS_SIZE); srd(a, 20, 4, 1376*1024); srd(a, 24, 6, 2097152)
    a.e('s_cmp_lg_u32 s32, 15\ns_cbranch_scc1 C2_w')
    a.e(f'v_lshrrev_b32 v8, 5, v1\nv_lshlrev_b32 v8, 2, v8\ns_mov_b32 s34, {WS_SEL:#x}\nbuffer_load_dword v9, v8, s[28:31], s34 offen\ns_waitcnt vmcnt(0)')
    a.e('v_and_b32 v8, 0xffff, v9\nv_sub_u32 v8, 0xffff, v8\nv_and_b32 v8, 2047, v8\nv_lshlrev_b32 v8, 10, v8\nv_lshl_add_u32 v8, v5, 2, v8\nv_and_b32 v10, 1, v6\nv_lshl_add_u32 v8, v10, 1, v8')
    a.e(f's_lshl_b32 s35, s2, 6\ns_add_u32 s36, s35, {WS_H:#x}\ns_add_u32 s37, s35, {WS_HN:#x}')
    a.e('buffer_load_ushort v10, v8, s[28:31], s36 offen\nbuffer_load_ushort v11, v8, s[28:31], s37 offen')
    a.e('v_and_b32 v9, 0xffff0000, v9\nv_ashrrev_i32 v12, 31, v9\nv_not_b32 v12, v12\nv_or_b32 v12, 0x80000000, v12\nv_xor_b32 v9, v9, v12\nv_and_b32 v9, 0xffff0000, v9')
    a.e(f'v_mul_f32 v9, {f2u(-L2E):#x}, v9\nv_exp_f32 v9, v9\nv_add_f32 v9, 1.0, v9\nv_rcp_f32 v9, v9')
    rnd_bf16(a, 9, 9)
    a.e('s_barrier\nv_lshlrev_b32 v7, 2, v1')
    for w in range(15): a.e(f'ds_read_b32 v{16+w}, v7 offset:{w*256}')
    a.e('s_waitcnt lgkmcnt(0)')
    for st, n in ((8, 7), (4, 4), (2, 2), (1, 1)):
        for w in range(n): a.e(f'v_add_f32 v{16+w}, v{16+w}, v{16+w+st}')
    rnd_bf16(a, 16, 16)
    a.e('v_mul_f32 v16, v16, v9')
    rnd_bf16(a, 16, 16)
    a.e('s_waitcnt vmcnt(0)\nv_lshlrev_b32 v10, 16, v10\nv_lshlrev_b32 v11, 16, v11\nv_add_f32 v16, v16, v11')
    rnd_bf16(a, 16, 16)
    a.e('v_add_f32 v16, v16, v10\nv_cvt_pk_bf16_f32 v16, v16, v16')
    a.e('buffer_store_short v16, v8, s[24:27], s35 offen\ns_endpgm')
    a.e('C2_w:')
    a.e(f's_mul_i32 s33, s32, 3')
    for s in range(3):
        a.e(f's_add_u32 s34, s33, {s}\ns_lshl_b32 s35, s34, 6\ns_add_u32 s35, s35, {WS_ACT:#x}\ns_cmp_lt_u32 s34, 43\ns_cselect_b32 s35, s35, 0x40000000')
        a.e(f'buffer_load_dwordx4 {vr(XS+4*s,4)}, v7, s[28:31], s35 offen')
    a.e('s_lshl_b32 s44, s33, 15\ns_lshl_b32 s45, s2, 6\ns_add_u32 s44, s44, s45')
    for s in range(3):
        for jh in range(2):
            a.e(f's_add_u32 s45, s44, {(32*s+4*jh)*1024}')
            for j in range(4):
                a.e(f'buffer_load_dword v{W+8*s+4*jh+j}, v3, s[20:23], s45 offen offset:{j*1024}')
    for s in range(3):
        a.e(f's_waitcnt vmcnt({16-8*s})')
        for e in range(2):
            for p in range(4):
                a.e(f'v_perm_b32 v{T+8*s+4*e+p}, v{W+8*s+2*p+1}, v{W+8*s+2*p}, s{40+e}')
        for e in range(2):
            a.e(f'v_mfma_f32_16x16x32_bf16 {vr(ACC+4*e,4)}, {vr(T+8*s+4*e,4)}, {vr(XS+4*s,4)}, ' + ('0' if s == 0 else vr(ACC+4*e,4)))
    a.e('s_lshl_b32 s34, s32, 8\nv_lshlrev_b32 v7, 7, v5\nv_lshl_add_u32 v7, v6, 4, v7\nv_add_u32 v7, s34, v7')
    a.e('v_cmp_gt_u32 vcc, 2, v5\ns_and_saveexec_b64 s[36:37], vcc')
    a.e(f'ds_write_b128 v7, {vr(ACC,4)}\nds_write_b128 v7, {vr(ACC+4,4)} offset:64')
    a.e('s_waitcnt lgkmcnt(0)\ns_barrier')
    a.e('C2_done:\ns_endpgm')
    return a.L

def build():
    ref = open('sequential_preLN__grouped_kv_mqa__moe_arch_mod__prompt.s.ref').read().split('\n')
    head = [l for l in ref if l.startswith(';') and '@launch' not in l and 'Override' not in l and 'grid=ceil' not in l]
    bl, bnv = gen_b()
    ks = [('proj_kernel', gen_a(), 256, 256, 512, A_LDS), ('attn_kernel', bl, bnv, 256, 512, B_LDS),
          ('gate_kernel', gen_c1(), 128, 43, 512, 4096), ('down_kernel', gen_c2(), 128, 16, 1024, 4096)]
    out = head + [f'; @launch kernel={n} grid=({g},1,1) block=({b},1,1) lds={l}' for n, _, _, g, b, l in ks]
    out += ['.amdgcn_target "amdgcn-amd-amdhsa--gfx950"', '.text']
    for n, L, *_ in ks:
        P, added = pad(L)
        print(n, 'instr lines', len(P), 'nops added', added, file=sys.stderr)
        out += header(n) + P
    out += ['.section .rodata,"a"']
    for n, _, nv, *_ in ks:
        out += ['.p2align 6', desc(n, nv)]
    return '\n'.join(out) + '\n'

if __name__ == '__main__':
    dst = sys.argv[1] if len(sys.argv) > 1 else 'sequential_preLN__grouped_kv_mqa__moe_arch_mod__prompt.s'
    open(dst, 'w').write(build())
```

```python
import sys, os
from asmlib import *
OPT = set(os.environ.get('GOPT','').split(','))

WS_Q   = 0x000000
WS_H   = 0x200000
WS_HN  = 0x400000
WS_WOF = 0x600000
WS_K   = 0x680000
WS_VT  = 0x690000
WS_KEY = 0x6B0000
WS_ACT = 0x6B4000
WS_SEL = 0x6B6000
WS_SIZE = 0x800000
import struct
def f2u(x): return struct.unpack('<I', struct.pack('<f', x))[0]
QSCALE = 0.25 * 1.4426950408889634
L2E = 1.4426950408889634
MARGIN = 90.0

def srd(a, d, p, size):
    a.e(f's_mov_b32 s{d}, s{p}\ns_and_b32 s{d+1}, s{p+1}, 0xffff\ns_mov_b32 s{d+2}, {size:#x}\ns_mov_b32 s{d+3}, 0x20000')

def unpack(a, dst, src, n):
    for i in range(n):
        a.e(f'v_lshlrev_b32 v{dst+2*i}, 16, v{src+i}')
        a.e(f'v_and_b32 v{dst+2*i+1}, 0xffff0000, v{src+i}')

def pack(a, dst, src, n):
    for i in range(n):
        a.e(f'v_cvt_pk_bf16_f32 v{dst+i}, v{src+2*i}, v{src+2*i+1}')

def rnd_bf16(a, d, s):
    a.e(f'v_cvt_pk_bf16_f32 v{d}, v{s}, v{s}\nv_and_b32 v{d}, 0xffff0000, v{d}')

def row16_sum(a, v):
    for k in (8, 4, 2, 1):
        a.e(f'v_add_f32_dpp v{v}, v{v}, v{v} row_ror:{k} row_mask:0xf bank_mask:0xf')

def header(name):
    return [f'.globl {name}', '.p2align 8', f'.type {name},@function', f'{name}:']

def desc(name, nv, ns=102):
    return f""".amdhsa_kernel {name}
  .amdhsa_next_free_vgpr {nv}
  .amdhsa_next_free_sgpr {ns}
  .amdhsa_accum_offset {(nv+3)//4*4}
  .amdhsa_group_segment_fixed_size 0
  .amdhsa_kernarg_size 104
  .amdhsa_user_sgpr_count 2
  .amdhsa_user_sgpr_kernarg_segment_ptr 1
  .amdhsa_system_sgpr_workgroup_id_x 1
.end_amdhsa_kernel"""

A_XROW = 1040
A_EX = 32 * A_XROW
A_KV = A_EX + 16384
A_LDS = A_KV + 8192

def gen_a():
    a = Asm()
    X, D, T, W = 8, 24, 56, 64
    KVR, KVF, WOR, WOF_, XF, XKV, TMP = 128, 144, 152, 160, 168, 232, 240
    a.e('s_cmp_ge_u32 s2, 256\ns_cbranch_scc1 A_done')
    a.e('s_load_dwordx4 s[4:7], s[0:1], 0\ns_load_dwordx4 s[8:11], s[0:1], 16\ns_load_dwordx2 s[12:13], s[0:1], 32\ns_load_dwordx2 s[14:15], s[0:1], 96')
    a.e('v_lshrrev_b32 v1, 6, v0\nv_readfirstlane_b32 s36, v1\nv_and_b32 v1, 63, v0')
    a.e('s_and_b32 s37, s2, 7\ns_lshr_b32 s39, s2, 5\ns_lshl_b32 s39, s39, 3\ns_add_u32 s37, s37, s39   ; tb')
    a.e('s_lshr_b32 s38, s2, 3\ns_and_b32 s38, s38, 3    ; cg')
    a.e('s_mov_b32 s40, 0x05040100\ns_mov_b32 s41, 0x07060302')
    a.e('v_lshlrev_b32 v2, 4, v1          ; lane*16')
    a.e('v_and_b32 v5, 15, v1             ; i\nv_lshrrev_b32 v6, 4, v1          ; g')
    a.e('v_lshlrev_b32 v3, 13, v6\nv_lshl_add_u32 v3, v5, 2, v3     ; g*8192 + i*4')
    a.e('v_lshlrev_b32 v4, 8, v6\nv_lshl_add_u32 v4, v5, 1, v4     ; g*256 + i*2')
    a.e('s_and_b32 s60, s36, 3            ; c4\ns_lshr_b32 s61, s36, 2           ; kh')
    a.e('s_waitcnt lgkmcnt(0)')
    srd(a, 16, 4, 2097152); srd(a, 20, 6, 524288)
    a.e('s_cmp_lt_u32 s38, 2\ns_cselect_b32 s8, s8, s10\ns_cselect_b32 s9, s9, s11')
    srd(a, 24, 8, 16384); srd(a, 28, 12, 524288); srd(a, 32, 14, WS_SIZE)
    a.e('s_cmp_lg_u32 s36, 7\ns_cbranch_scc1 A_nowo1')
    a.e('s_lshr_b32 s62, s2, 4\ns_lshl_b32 s62, s62, 15\ns_and_b32 s63, s2, 15\ns_lshl_b32 s63, s63, 6\ns_add_u32 s62, s62, s63\ns_add_u32 s63, s62, 4096')
    for j in range(8):
        a.e(f'buffer_load_dword v{WOR+j}, v3, s[28:31], s{62+j//4} offen offset:{(j%4)*1024}')
    a.e('A_nowo1:')
    a.e('s_lshl_b32 s42, s37, 15\ns_lshl_b32 s43, s36, 12\ns_add_u32 s42, s42, s43')
    for r in range(4):
        a.e(f'buffer_load_dwordx4 {vr(X+4*r,4)}, v2, s[16:19], s42 offen offset:{r*1024}')
    a.e('s_lshl_b32 s44, s61, 18\ns_lshl_b32 s45, s38, 8\ns_add_u32 s44, s44, s45\ns_lshl_b32 s45, s60, 6\ns_add_u32 s44, s44, s45')
    def wq_loads(s0, s1):
        for s in range(s0, s1):
            for jh in range(2):
                a.e(f's_add_u32 s45, s44, {(32*s+4*jh)*1024}')
                for j in range(4):
                    a.e(f'buffer_load_dword v{W+8*s+4*jh+j}, v3, s[20:23], s45 offen offset:{j*1024}')
    wq_loads(0, 5)
    a.e('s_lshl_b32 s46, s36, 11')
    for sp in range(2):
        for j in range(8):
            a.e(f'buffer_load_ushort v{KVR+8*sp+j}, v4, s[24:27], s46 offen offset:{sp*1024+j*32}')
    a.e('s_waitcnt vmcnt(56)')
    for r in range(4): unpack(a, D+8*r, X+4*r, 4)
    for r in range(4):
        d = D+8*r; t = TMP+4*r
        a.e(f'v_pk_add_f32 {vr(t,2)}, {vr(d,2)}, {vr(d+2,2)}\nv_pk_add_f32 {vr(t+2,2)}, {vr(d+4,2)}, {vr(d+6,2)}')
    for r in range(4):
        t = TMP+4*r
        a.e(f'v_pk_add_f32 {vr(t,2)}, {vr(t,2)}, {vr(t+2,2)}')
    for r in range(4):
        t = TMP+4*r
        a.e(f'v_add_f32 v{t}, v{t}, v{t+1}')
    def red4():
        t0, t1, t2, t3 = TMP, TMP+4, TMP+8, TMP+12
        a.e(f'v_permlane32_swap_b32 v{t0}, v{t1}\nv_permlane32_swap_b32 v{t2}, v{t3}')
        a.e(f'v_add_f32 v{t0}, v{t0}, v{t1}\nv_add_f32 v{t2}, v{t2}, v{t3}')
        a.e(f'v_permlane16_swap_b32 v{t0}, v{t2}\nv_add_f32 v{t0}, v{t0}, v{t2}')
        row16_sum(a, t0)
    red4()
    LN = [0, 32, 16, 48]
    a.e(f'v_mul_f32 v{TMP}, {f2u(1/512):#x}, v{TMP}     ; mean')
    rnd_bf16(a, TMP+1, TMP)
    a.e(f'v_sub_f32 v7, v{TMP}, v{TMP+1}')
    for r in range(4): a.e(f'v_readlane_b32 s{64+2*r}, v{TMP+1}, {LN[r]}')
    wq_loads(5, 8)
    for r in range(4):
        for p in range(4):
            d = D+8*r+2*p
            a.e(f'v_pk_add_f32 {vr(d,2)}, {vr(d,2)}, s[{64+2*r}:{65+2*r}] op_sel_hi:[1,0] neg_lo:[0,1] neg_hi:[0,1]')
    for r in range(4):
        d = D+8*r; t = TMP+4*r
        a.e(f'v_pk_mul_f32 {vr(t,2)}, {vr(d,2)}, {vr(d,2)}')
    for p in range(1, 4):
        for r in range(4):
            d = D+8*r+2*p; t = TMP+4*r
            a.e(f'v_pk_fma_f32 {vr(t,2)}, {vr(d,2)}, {vr(d,2)}, {vr(t,2)}')
    for r in range(4):
        t = TMP+4*r
        a.e(f'v_add_f32 v{t}, v{t}, v{t+1}')
    red4()
    a.e(f'v_mul_f32 v{TMP}, {f2u(1/512):#x}, v{TMP}')
    a.e(f'v_fma_f32 v{TMP}, -v7, v7, v{TMP}       ; var')
    rnd_bf16(a, TMP, TMP)
    a.e(f'v_add_f32 v{TMP}, {f2u(1e-5):#x}, v{TMP}')
    rnd_bf16(a, TMP, TMP)
    a.e(f'v_sqrt_f32 v{TMP}, v{TMP}')
    rnd_bf16(a, TMP, TMP)
    a.e(f'v_rcp_f32 v{TMP}, v{TMP}')
    for r in range(4): pack(a, X+4*r, D+8*r, 4)
    for r in range(4): a.e(f'v_readlane_b32 s{64+2*r}, v{TMP}, {LN[r]}')
    for r in range(4): unpack(a, D+8*r, X+4*r, 4)
    a.e(f's_mul_i32 s47, s36, {4*A_XROW}\nv_add_u32 v7, s47, v2')
    for r in range(4):
        for p in range(4):
            d = D+8*r+2*p
            a.e(f'v_pk_mul_f32 {vr(d,2)}, {vr(d,2)}, s[{64+2*r}:{65+2*r}] op_sel_hi:[1,0]')
        pack(a, X+4*r, D+8*r, 4)
        a.e(f'ds_write_b128 v7, {vr(X+4*r,4)} offset:{r*A_XROW}')
    a.e(f'v_mul_u32_u24 v7, {A_XROW}, v5\nv_lshl_add_u32 v7, v6, 4, v7          ; i*1040 + g*16')
    a.e(f's_mul_i32 s47, s61, {16*A_XROW+512}')
    a.e(f's_mul_i32 s48, s61, {16*A_XROW-512}\ns_sub_u32 s48, {16*A_XROW}, s48')
    a.e(f's_and_b32 s49, s38, 1\ns_mul_i32 s49, s49, {16*A_XROW}\ns_lshl_b32 s50, s36, 7\ns_add_u32 s49, s49, s50')
    a.e(f'v_add_u32 v{TMP+4}, s47, v7\nv_add_u32 v{TMP+5}, s48, v7\nv_add_u32 v{TMP+6}, s49, v7')
    def perms(dst, src, both=True):
        for p in range(4):
            a.e(f'v_perm_b32 v{dst+p}, v{src+2*p+1}, v{src+2*p}, s40')
        if both:
            for p in range(4):
                a.e(f'v_perm_b32 v{dst+4+p}, v{src+2*p+1}, v{src+2*p}, s41')
    a.e('s_waitcnt vmcnt(24)')
    for s in range(5): perms(T+8*s, W+8*s)
    perms(KVF, KVR, False); perms(KVF+4, KVR+8, False)
    a.e('s_waitcnt lgkmcnt(0)\ns_barrier')
    for s in range(8):
        a.e(f'ds_read_b128 {vr(XF+8*s,4)}, v{TMP+4} offset:{s*64}\nds_read_b128 {vr(XF+8*s+4,4)}, v{TMP+5} offset:{s*64}')
        if s == 5:
            pass
    a.e(f'ds_read_b128 {vr(XKV,4)}, v{TMP+6}\nds_read_b128 {vr(XKV+4,4)}, v{TMP+6} offset:64')
    a.e('s_waitcnt vmcnt(0)')
    for s in range(5, 8): perms(T+8*s, W+8*s)
    ACC = 8; ACCKV = 24; EXR = 28
    for s in range(8):
        left = 18 - 2*(s+1)
        a.e(f's_waitcnt lgkmcnt({min(left,15)})')
        for tl in range(2):
            for e in range(2):
                acc = ACC + (tl*2+e)*4
                c = '0' if s == 0 else vr(acc,4)
                a.e(f'v_mfma_f32_16x16x32_bf16 {vr(acc,4)}, {vr(T+8*s+4*e,4)}, {vr(XF+8*s+4*tl,4)}, {c}')
    a.e('s_waitcnt lgkmcnt(0)')
    a.e('s_cmp_lt_u32 s38, 2\ns_cbranch_scc0 A_v')
    a.e(f'v_mfma_f32_16x16x32_bf16 {vr(ACCKV,4)}, {vr(KVF,4)}, {vr(XKV,4)}, 0')
    a.e(f'v_mfma_f32_16x16x32_bf16 {vr(ACCKV,4)}, {vr(KVF+4,4)}, {vr(XKV+4,4)}, {vr(ACCKV,4)}')
    a.e('s_branch A_kvj\nA_v:')
    a.e(f'v_mfma_f32_16x16x32_bf16 {vr(ACCKV,4)}, {vr(XKV,4)}, {vr(KVF,4)}, 0')
    a.e(f'v_mfma_f32_16x16x32_bf16 {vr(ACCKV,4)}, {vr(XKV+4,4)}, {vr(KVF+4,4)}, {vr(ACCKV,4)}')
    a.e('A_kvj:')
    a.e(f's_lshl_b32 s47, s36, 11\ns_xor_b32 s48, s47, 8192\ns_lshl_b32 s49, s36, 10')
    a.e(f'v_add_u32 v{TMP+4}, s47, v2\nv_add_u32 v{TMP+5}, s48, v2\nv_add_u32 v{TMP+6}, s49, v2')
    a.e('s_nop 4')
    a.e(f'ds_write_b128 v{TMP+4}, {vr(ACC+8,4)} offset:{A_EX}\nds_write_b128 v{TMP+4}, {vr(ACC+12,4)} offset:{A_EX+1024}')
    a.e(f'ds_write_b128 v{TMP+6}, {vr(ACCKV,4)} offset:{A_KV}')
    a.e('s_cmp_lg_u32 s36, 7\ns_cbranch_scc1 A_nowo2')
    perms(WOF_, WOR)
    a.e('s_lshr_b32 s62, s2, 5\ns_lshl_b32 s62, s62, 13\ns_bfe_u32 s63, s2, 0x30001\ns_lshl_b32 s63, s63, 16\ns_add_u32 s62, s62, s63')
    a.e('s_bfe_u32 s63, s2, 0x10004\ns_lshl_b32 s63, s63, 12\ns_add_u32 s62, s62, s63\ns_and_b32 s63, s2, 1\ns_lshl_b32 s63, s63, 11\ns_add_u32 s62, s62, s63')
    a.e(f's_add_u32 s62, s62, {WS_WOF:#x}')
    a.e(f'buffer_store_dwordx4 {vr(WOF_,4)}, v2, s[32:35], s62 offen\nbuffer_store_dwordx4 {vr(WOF_+4,4)}, v2, s[32:35], s62 offen offset:1024')
    a.e('A_nowo2:')
    a.e('s_waitcnt lgkmcnt(0)\ns_barrier')
    a.e(f'ds_read_b128 {vr(EXR,4)}, v{TMP+5} offset:{A_EX}\nds_read_b128 {vr(EXR+4,4)}, v{TMP+5} offset:{A_EX+1024}')
    a.e('s_cmp_lg_u32 s36, 0\ns_cbranch_scc1 A_nokv1')
    for w in range(8):
        a.e(f'ds_read_b128 {vr(XF+4*w,4)}, v2 offset:{A_KV+w*1024}')
    a.e('A_nokv1:')
    a.e('v_lshlrev_b32 v7, 10, v5\nv_lshl_add_u32 v7, v6, 4, v7       ; n*1024 + g*16')
    a.e('s_lshl_b32 s47, s37, 15\ns_lshl_b32 s48, s61, 14\ns_add_u32 s47, s47, s48\ns_lshl_b32 s48, s38, 8\ns_add_u32 s47, s47, s48\ns_lshl_b32 s48, s60, 6\ns_add_u32 s47, s47, s48')
    if WS_Q: a.e(f's_add_u32 s47, s47, {WS_Q:#x}')
    a.e(f's_mov_b32 s64, {f2u(QSCALE):#x}')
    a.e('s_waitcnt lgkmcnt(0)')
    for p in range(4):
        a.e(f'v_pk_add_f32 {vr(ACC+2*p,2)}, {vr(ACC+2*p,2)}, {vr(EXR+2*p,2)}')
    for r in range(4):
        a.e(f'v_cvt_pk_bf16_f32 v{EXR+r}, v{ACC+r}, v{ACC+4+r}')
    unpack(a, ACC, EXR, 4)
    for p in range(4):
        a.e(f'v_pk_mul_f32 {vr(ACC+2*p,2)}, {vr(ACC+2*p,2)}, s[64:65] op_sel_hi:[1,0]')
    pack(a, EXR, ACC, 4)
    a.e(f'buffer_store_dwordx4 {vr(EXR,4)}, v7, s[32:35], s47 offen')
    a.e('s_cmp_lg_u32 s36, 0\ns_cbranch_scc1 A_done')
    for st in (4, 2, 1):
        for w in range(st):
            for p in range(2):
                a.e(f'v_pk_add_f32 {vr(XF+4*w+2*p,2)}, {vr(XF+4*w+2*p,2)}, {vr(XF+4*(w+st)+2*p,2)}')
    pack(a, XF+4, XF, 2)
    a.e('v_lshlrev_b32 v7, 5, v5\nv_lshl_add_u32 v7, v6, 3, v7       ; (l%16)*32 + g*8')
    a.e('s_lshl_b32 s47, s37, 1\ns_and_b32 s48, s38, 1\ns_add_u32 s47, s47, s48')
    a.e(f's_mul_i32 s48, s47, 544\ns_add_u32 s48, s48, {WS_VT:#x}\ns_lshl_b32 s47, s47, 9\ns_add_u32 s47, s47, {WS_K:#x}')
    a.e('s_cmp_lt_u32 s38, 2\ns_cselect_b32 s47, s47, s48')
    a.e(f'buffer_store_dwordx2 {vr(XF+4,2)}, v7, s[32:35], s47 offen')
    a.e('s_cbranch_scc1 A_done')
    a.e(f'v_mov_b32 v{XF}, 0x3f803f80\nv_lshlrev_b32 v7, 2, v1\ns_mov_b64 exec, 0xff')
    a.e(f'buffer_store_dword v{XF}, v7, s[32:35], s47 offen offset:512')
    a.e('A_done:\ns_endpgm')
    return a.L

B_PSZ = 17408
B_SUM, B_M0, B_O, B_Q, B_FLAG, B_WO = 0, 34816, 36864, 38912, 47104, 48128
NSLOT = 14
B_LDS = B_WO + 8 * NSLOT * 1024
B_AROW = 1040
WS_DBG = 0x700000

def gen_b():
    a = Asm()
    nst = [0]
    def stamp(grp='stamp'):
        if 'stamp' in OPT and (grp == 'all' or (grp == 'stamp' and 'sttail' not in OPT) or (grp == 'tail' and 'sttail' in OPT)):
            a.e(f's_memtime s[{60+2*nst[0]}:{61+2*nst[0]}]'); nst[0] += 1
    vL4, vL16, vM0, vOw, vN, vOr, vWO, vIDX, vT0, vT1 = 2, 3, 4, 5, 6, 7, 8, 9, 10, 11
    CHK0, CHK1, vPw, vLw = 12, 13, 14, 15
    vLr = 0
    K, V = 16, 48
    Q, Z, C, SA, SB, OA, OB, OUT, WOT, OF, XR, WR, WL = 112, 116, 120, 136, 152, 168, 184, 200, 216, 232, 240, 244, 248
    NV = 256
    vK, vV = OUT, OUT+1
    a.e('s_cmp_ge_u32 s2, 256\ns_cbranch_scc1 B_done')
    stamp('all')
    if 'stamp' in OPT: a.e('s_memrealtime s[96:97]')
    a.e('s_load_dwordx2 s[10:11], s[0:1], 96\ns_load_dwordx2 s[4:5], s[0:1], 0\ns_load_dwordx2 s[6:7], s[0:1], 48\ns_load_dwordx2 s[8:9], s[0:1], 80')
    a.e('v_lshrrev_b32 v1, 6, v0\nv_readfirstlane_b32 s32, v1\nv_and_b32 v1, 63, v0')
    a.e(f'v_lshlrev_b32 v{vL4}, 2, v1\nv_lshlrev_b32 v{vL16}, 4, v1')
    n, h2 = SA, SA+1
    a.e(f'v_and_b32 v{n}, 31, v1\nv_lshrrev_b32 v{h2}, 5, v1')
    a.e(f'v_lshrrev_b32 v{SB}, 2, v{n}\nv_lshlrev_b32 v{SB}, 10, v{SB}\nv_and_b32 v{vT0}, 3, v{n}\nv_lshl_add_u32 v{SB}, v{vT0}, 5, v{SB}\nv_lshl_add_u32 v{SB}, v{h2}, 4, v{SB}')
    a.e(f'v_lshlrev_b32 v{vK}, 5, v{n}\nv_lshl_add_u32 v{vK}, v{h2}, 4, v{vK}')
    a.e(f's_lshl_b32 s34, s2, 13\ns_lshl_b32 s35, s32, 7\ns_add_u32 s35, s35, s34')
    if WS_Q: a.e(f's_add_u32 s35, s35, {WS_Q:#x}')
    a.e(f's_lshl_b32 s36, s32, 13\ns_add_u32 s36, s36, {WS_K:#x}\ns_add_u32 s37, s36, 4096')
    a.e('s_waitcnt lgkmcnt(0)')
    srd(a, 28, 10, WS_SIZE)
    vm = []
    def vmi(tag, text): vm.append(tag); return text
    def wv(tag): return ('W', tag)
    def emit(l):
        if isinstance(l, tuple):
            if l[0] == 'W':
                k = len(vm) - 1 - vm.index(l[1])
                a.e(f's_waitcnt vmcnt({min(k,63)})')
            else:
                vm.append(l[1]); a.e(l[2])
        else: a.e(l)
    def ldK(kt): return ('V', ('K', kt), f'buffer_load_dwordx4 {vr(K+4*kt,4)}, v{vK}, s[28:31], s{36+kt//4} offen offset:{(kt%4)*1024}')
    def ldV(bl): return ('V', ('V', bl), f'buffer_load_dwordx4 {vr(V+4*bl,4)}, v{vV}, s[28:31], s{38+bl//8} offen offset:{(bl%8)*544}')
    emit(('V', ('Q', 0), f'buffer_load_dwordx4 {vr(Q,4)}, v{SB}, s[28:31], s35 offen'))
    emit(ldK(0)); emit(ldK(1))
    a.e(f'v_cmp_eq_u32 vcc, 16, v{n}\nv_mov_b32 v{vT1}, 0x40000000\nv_lshlrev_b32 v{vT0}, 4, v{h2}\nv_add_u32 v{vT0}, 512, v{vT0}')
    a.e(f'v_cndmask_b32 v{vT1}, v{vT1}, v{vT0}, vcc\nv_cmp_gt_u32 vcc, 16, v{n}\nv_cndmask_b32 v{vV}, v{vT1}, v{vK}, vcc')
    a.e(f's_mul_i32 s38, s32, 8704\ns_add_u32 s38, s38, {WS_VT:#x}\ns_add_u32 s39, s38, {8*544}')
    for l in [ldV(0), ldV(1), ldK(2), ldV(2), ldV(3), ldK(3)]: emit(l)
    srd(a, 16, 4, 2097152); srd(a, 20, 6, 1024); srd(a, 24, 8, 2097152)
    a.e(f's_lshl_b32 s40, s32, 10\ns_add_u32 s40, s40, s34')
    a.e(f's_lshl_b32 s41, s32, 16\ns_add_u32 s41, s41, {WS_WOF:#x}\ns_mul_i32 s42, s32, {NSLOT*1024}\ns_add_u32 s42, s42, {B_WO}')
    def dma(Fs):
        L = []; base = None
        for F in Fs:
            if F > 61: continue
            sl = F % NSLOT
            if base is None or not (0 <= F - base[0] <= 3 and sl - base[1] == F - base[0]):
                base = (F, sl)
                L.append(f's_add_u32 m0, s42, {sl*1024}')
                L.append(f's_add_u32 s43, s41, {F*1024}')
            L.append(('V', ('F', F), f'buffer_load_dwordx4 v{vL16}, s[28:31], s43 offen offset:{(F-base[0])*1024} lds'))
        return L
    a.e('s_mov_b32 s33, 0')
    a.e(f'v_lshlrev_b32 v{vM0}, 3, v{n}\nv_add_u32 v{vM0}, {B_M0}, v{vM0}')
    a.e(f's_and_b32 s44, s32, 3\ns_lshr_b32 s45, s44, 1\ns_lshl_b32 s45, s45, 4\ns_and_b32 s46, s44, 1\ns_lshl_b32 s46, s46, 2\ns_add_u32 s45, s45, s46')
    a.e(f'v_lshlrev_b32 v{vLr}, 5, v{n}         ; n*32')
    a.e(f'v_lshl_add_u32 v{vOw}, v{h2}, 3, v{vLr}\nv_add_u32 v{vOw}, s45, v{vOw}')
    a.e(f's_lshr_b32 s45, s44, 1\ns_lshl_b32 s45, s45, 10\ns_lshl_b32 s46, s46, 1\ns_add_u32 s45, s45, s46\nv_add_u32 v{vN}, s45, v{vL16}     ; lane*16 + (j/2)*1024 + (j%2)*8')
    a.e(f's_lshl_b32 s45, s32, 11\nv_add_u32 v{vPw}, s45, v{vL16}')
    a.e(f's_lshl_b32 s45, s32, 2\nv_add_u32 v{vLw}, s45, v{vLr}')
    a.e(f'v_and_b32 v{vOr}, 7, v1\nv_lshlrev_b32 v{vOr}, 7, v{vOr}\nv_lshrrev_b32 v{vT0}, 4, v1\nv_lshl_add_u32 v{vOr}, v{vT0}, 4, v{vOr}')
    a.e(f'v_add_u32 v{vWO}, s42, v{vL16}')
    a.e(f'v_mov_b32 v{vIDX}, 0xdddd')
    for i in range(4): a.e(f'v_mov_b32 v{Z+i}, 0')
    a.e(f's_lshl_b32 s48, s32, 10\ns_lshl_b32 s49, s32, 8')
    a.e(f'ds_write_b32 v{vL4}, v{Z} offset:{B_FLAG}')
    stamp()
    emit(wv(('K', 1)))
    stamp()
    NT = WOT
    a.e(f'v_mfma_f32_32x32x16_bf16 {vr(SA,16)}, {vr(K,4)}, {vr(Q,4)}, 0')
    a.e(f'v_mfma_f32_32x32x16_bf16 {vr(SB,16)}, {vr(K+4,4)}, {vr(Q,4)}, 0')
    a.e(f'v_add_u32 v{vT0}, s48, v{vL16}\nds_write_b128 v{vT0}, {vr(Q,4)} offset:{B_Q}')
    def maxtree(dst, bases, first):
        regs = [b+i for b in bases for i in range(16)]
        if first:
            a.e(f'v_max_f32 v{dst}, v{regs[0]}, v{regs[1]}'); regs = regs[2:]
        for i in range(0, len(regs), 2):
            a.e(f'v_max3_f32 v{dst}, v{dst}, v{regs[i]}, v{regs[i+1]}')
    maxtree(NT, [SA], True); maxtree(NT+1, [SB], True)
    a.e(f'v_max_f32 v{NT}, v{NT}, v{NT+1}\nv_mov_b32 v{NT+1}, v{NT}\nv_permlane32_swap_b32 v{NT}, v{NT+1}\nv_max_f32 v{NT}, v{NT}, v{NT+1}')
    a.e(f'v_sub_f32 v{NT}, {f2u(-MARGIN):#x}, v{NT}\nv_mov_b32 v{NT+1}, v{NT}')
    a.e(f'v_add_u32 v{vT0}, s49, v{vM0}\nds_write_b64 v{vT0}, {vr(NT,2)}')
    a.e('B_start:')
    a.e(f'v_mov_b32 v{CHK0}, 0\nv_mov_b32 v{CHK1}, 0x7f800000')
    a.e(f'v_mfma_f32_32x32x16_bf16 {vr(OA,16)}, {vr(Z,4)}, {vr(Z,4)}, 0\nv_mfma_f32_32x32x16_bf16 {vr(OB,16)}, {vr(Z,4)}, {vr(Z,4)}, 0')
    a.e('s_waitcnt lgkmcnt(0)\ns_barrier')
    def ldCQ(u):
        L = [f'ds_read_b128 {vr(Q,4)}, v{vL16} offset:{B_Q+u*1024}']
        for i in range(4):
            L.append(f'ds_read2_b64 {vr(C+4*i,4)}, v{vM0} offset0:{u*32} offset1:{u*32}')
        return L
    def QK(kt): return f'v_mfma_f32_32x32x16_bf16 {vr(SA if kt%2==0 else SB,16)}, {vr(K+4*kt,4)}, {vr(Q,4)}, {vr(C,16)}'
    def PV(u, kt, hf):
        s = (SA if kt%2==0 else SB) + 8*hf
        return f'v_smfmac_f32_32x32x32_bf16 {vr(OA if u%2==0 else OB,16)}, {vr(V+8*kt+4*hf,4)}, {vr(s,8)}, v{vIDX}'
    def parts(u):
        o = OA if u%2==0 else OB; b = B_SUM + (u%2)*B_PSZ
        return [f'ds_write_b128 v{vPw}, {vr(o,4)} offset:{b}', f'ds_write_b128 v{vPw}, {vr(o+4,4)} offset:{b+1024}',
                's_mov_b64 exec, 0xffffffff', f'ds_write_b32 v{vLw}, v{o+8} offset:{b+16384}', 's_mov_b64 exec, -1']
    def zero(u):
        return [f'v_mfma_f32_32x32x16_bf16 {vr(OA if u%2==0 else OB,16)}, {vr(Z,4)}, {vr(Z,4)}, 0']
    lab = [0]
    NORM_OLD = 'normold' in OPT
    def role(L):
        lab[0] += 1
        return ['s_cmp_lt_u32 s32, 4', f's_cbranch_scc{0 if NORM_OLD else 1} B_r{lab[0]}', '; @opt_begin'] + L + ['; @opt_end', f'B_r{lab[0]}:']
    def norm_rd(u, P=WOT, Lr=OF):
        b = B_SUM + (u%2)*B_PSZ
        assert b % 512 == 0
        return [f'ds_read2st64_b64 {vr(P+4*i,4)}, v{vN} offset0:{b//512+8*i} offset1:{b//512+8*i+4}' for i in range(4)] + \
               [f'ds_read_b128 {vr(Lr+4*i,4)}, v{vLr} offset:{b+16384+16*i}' for i in range(2)]
    def norm_do(u, P=WOT, Lr=OF):
        L = [f'v_pk_add_f32 {vr(Lr,2)}, {vr(Lr,2)}, {vr(Lr+2,2)}', f'v_pk_add_f32 {vr(Lr+4,2)}, {vr(Lr+4,2)}, {vr(Lr+6,2)}']
        L += [f'v_pk_add_f32 {vr(P+4*i,2)}, {vr(P+4*i,2)}, {vr(P+4*i+2,2)}' for i in range(4)]
        L += [f'v_pk_add_f32 {vr(Lr,2)}, {vr(Lr,2)}, {vr(Lr+4,2)}']
        L += [f'v_pk_add_f32 {vr(P,2)}, {vr(P,2)}, {vr(P+4,2)}', f'v_add_f32 v{Lr}, v{Lr}, v{Lr+1}', f'v_pk_add_f32 {vr(P+8,2)}, {vr(P+8,2)}, {vr(P+12,2)}']
        L += [f'v_rcp_f32 v{Lr+2}, v{Lr}', f'v_pk_add_f32 {vr(P,2)}, {vr(P,2)}, {vr(P+8,2)}',
              f'v_maximum3_f32 v{Lr+1}, |v{P}|, |v{P+1}|, |v{P+1}|',
              f'v_pk_mul_f32 {vr(P,2)}, {vr(P,2)}, {vr(Lr+2,2)} op_sel_hi:[1,0]',
              f'v_maximum3_f32 v{CHK0}, v{CHK0}, v{Lr}, v{Lr+1}',
              f'v_cvt_pk_bf16_f32 v{P}, v{P}, v{P+1}',
              f'v_min_f32 v{CHK1}, v{CHK1}, v{Lr+1}',
              f'ds_write_b32 v{vOw}, v{P} offset:{B_O+(u%2)*1024}']
        return L
    def op_rd_of(t): return [f'ds_read_b128 {vr(OF+4*s,4)}, v{vOr} offset:{B_O+(t%2)*1024+s*64}' for s in range(2)]
    def op_rd_wo(t, s, dst=None):
        dst = WOT if dst is None else dst
        Fs = [8*t+4*s+c for c in range(4) if 8*t+4*s+c <= 61]
        return [wv(('F', Fs[-1]))] + [f'ds_read_b128 {vr(dst+4*(F%4),4)}, v{vWO} offset:{(F%NSLOT)*1024}' for F in Fs]
    def op_mm(t, s, src=None):
        src = WOT if src is None else src
        L = []
        for c in range(4):
            F = 8*t+4*s+c
            r = src+4*c if F <= 61 else WL+4*(F-62)
            L.append(f'v_mfma_f32_16x16x32_bf16 {vr(OUT+4*c,4)}, {vr(r,4)}, {vr(OF+4*s,4)}, ' + ('0' if (t == 0 and s == 0) else vr(OUT+4*c,4)))
        return L
    for l in ldCQ(0): a.e(l)
    a.e('s_waitcnt lgkmcnt(0)')
    a.e(QK(0))
    LG0 = 's_waitcnt lgkmcnt(0)'
    def firstonly(L):
        lab[0] += 1
        return ['s_cmp_lg_u32 s33, 0', f's_cbranch_scc1 B_r{lab[0]}', '; @opt_begin'] + L + ['; @opt_end', f'B_r{lab[0]}:']
    PRIO = {2: 3, 4: 2, 6: 1, 0: 0}
    for u in range(8):
        for kt in range(8):
            inj = {p: [] for p in range(17)}
            cur = SA if kt%2==0 else SB
            first = (u == 0)
            if 'noprio' not in OPT and kt in PRIO: inj[0] += [f's_setprio {PRIO[kt]}']
            if first and kt < 6:
                nk = kt + 2
                inj[0] += firstonly([ldV(2*nk), ldV(2*nk+1)] + ([ldK(nk+2)] if nk+2 < 8 else []))
            if kt > 0: inj[2] += ([wv(('V', 2*kt-1))] if first else []) + [PV(u, kt-1, 1)]
            elif u > 0: inj[2] += [PV(u-1, 7, 1)]
            if kt < 7: inj[5] += ([wv(('K', kt+1))] if first else []) + [QK(kt+1)]
            elif u < 7: inj[5] += [LG0, QK(0)]
            inj[10] += ([wv(('V', 2*kt))] if first else []) + [PV(u, kt, 0)]
            if u == 0 and kt == 7: inj[12] += [wv(('V', 15))]
            if u > 0:
                if kt == 0: inj[13] += parts(u-1)
                if kt == 1: inj[16] += [LG0, 's_barrier']
                if kt == 2:
                    inj[0] += role(norm_rd(u-1))
                    inj[13] += zero(u-1)
                if kt == 3: inj[0] += role([LG0] + norm_do(u-1))
            if u == 1:
                if kt in (2, 3, 4, 5):
                    Fs = list(range(4*(kt-2), min(4*(kt-2)+4, NSLOT)))
                    inj[7] += dma(Fs)
                if kt == 5:
                    inj[12] += ([('V', ('X', 0), f'buffer_load_dwordx4 {vr(XR,4)}, v{vL16}, s[16:19], s40 offen'),
                                   ('V', ('W', 0), f'buffer_load_dwordx4 {vr(WR,4)}, v{vL16}, s[20:23], 0 offen'),
                                   f's_add_u32 s43, s41, {62*1024}',
                                   ('V', ('L', 0), f'buffer_load_dwordx4 {vr(WL,4)}, v{vL16}, s[28:31], s43 offen'),
                                   ('V', ('L', 1), f'buffer_load_dwordx4 {vr(WL+4,4)}, v{vL16}, s[28:31], s43 offen offset:1024')])
            if u > 1:
                t = u-2
                if kt == 3: inj[4] += op_rd_of(t) + op_rd_wo(t, 0)
                if kt == 4:
                    mm = op_mm(t, 0); inj[0] += [LG0] + dma([8*t+c+NSLOT for c in range(4)]); inj[1] += mm[0:1]; inj[4] += mm[1:2]; inj[8] += mm[2:3]; inj[12] += mm[3:4]
                    inj[14] += op_rd_wo(t, 1)
                if kt == 5:
                    mm = op_mm(t, 1); inj[7] += [LG0] + dma([8*t+4+c+NSLOT for c in range(4)]); inj[8] += mm[0:1]; inj[12] += mm[1:2]; inj[14] += mm[2:3]; inj[16] += mm[3:4]
            if kt == 6 and u < 7: inj[13] += ldCQ(u+1)
            a.c(f'tile u={u} kt={kt}')
            if kt == 0: stamp()
            for p in range(17):
                for l in inj[p]: emit(l)
                if p < 16: a.e(f'v_exp_f32 v{cur+p}, v{cur+p}')
    a.c('tail')
    stamp('all')
    a.e(PV(7, 7, 1))
    for l in op_rd_wo(6, 0, C) + op_rd_wo(6, 1, SA): emit(l)
    for l in parts(7): a.e(l)
    a.e(LG0); stamp('tail'); a.e('s_barrier'); stamp('tail')
    for l in role(norm_rd(7, WOT, OA)) + op_rd_of(6): a.e(l)
    a.e(LG0); stamp('tail')
    chk = [f'v_mov_b32 v{vT0}, 0x7f800000', f'v_cmp_lt_f32 vcc, v{CHK0}, v{vT0}', f'v_mov_b32 v{vT0}, {f2u(2.0**-105):#x}', f'v_cmp_ge_f32 s[50:51], v{CHK1}, v{vT0}',
           's_and_b64 vcc, vcc, s[50:51]', 's_cmp_eq_u64 vcc, -1', 's_cbranch_scc1 B_ok1', f'v_mov_b32 v{vT0}, 1', f'ds_write_b32 v{vL4}, v{vT0} offset:{B_FLAG}', 'B_ok1:']
    for l in role(norm_do(7, WOT, OA) + chk): a.e(l)
    stamp('tail')
    for l in op_rd_wo(7, 0, SB) + op_rd_wo(7, 1, OB): emit(l)
    for l in op_mm(6, 0, C) + op_mm(6, 1, SA): a.e(l)
    a.e(LG0); stamp('tail'); a.e('s_barrier'); stamp('tail')
    a.e(f'ds_read_b32 v{vT0}, v{vL4} offset:{B_FLAG}')
    for l in op_rd_of(7): a.e(l)
    a.e(LG0)
    a.e(f'v_readfirstlane_b32 s50, v{vT0}')
    for l in op_mm(7, 0, SB) + op_mm(7, 1, OB): a.e(l)
    if 'noredo' not in OPT: a.e('s_cmp_gt_u32 s50, s33\ns_cbranch_scc1 B_redo')
    stamp('all')
    a.e(f'v_and_b32 v{vT0}, 15, v1\nv_mul_u32_u24 v{vT0}, {B_AROW}, v{vT0}\nv_lshrrev_b32 v{vT1}, 4, v1\nv_lshl_add_u32 v{vT0}, v{vT1}, 4, v{vT0}\ns_lshl_b32 s50, s32, 7\nv_add_u32 v{vT0}, s50, v{vT0}')
    a.e(f's_mul_i32 s50, s32, {B_AROW}\nv_add_u32 v{vT1}, s50, v{vL16}')
    XFL, WF, HF, DD, P = K, K+8, K+16, K+24, V
    unpack(a, XFL, XR, 4); unpack(a, WF, WR, 4)
    for hh in range(2):
        for r in range(4):
            a.e(f'v_cvt_pk_bf16_f32 v{P+4*hh+r}, v{OUT+8*hh+r}, v{OUT+8*hh+4+r}')
        a.e(f'ds_write_b128 v{vT0}, {vr(P+4*hh,4)} offset:{B_SUM+64*hh}')
    a.e(LG0); stamp('tail'); a.e('s_barrier')
    a.e(f'ds_read_b128 {vr(P,4)}, v{vT1} offset:{B_SUM}')
    a.e(LG0); stamp('tail')
    unpack(a, HF, P, 4)
    for p in range(4): a.e(f'v_pk_add_f32 {vr(HF+2*p,2)}, {vr(HF+2*p,2)}, {vr(XFL+2*p,2)}')
    HP, NP, OP, T4 = V+8, V+12, V+16, V+20
    pack(a, HP, HF, 4)
    unpack(a, HF, HP, 4)
    a.e(f's_add_u32 s50, s40, {WS_H:#x}\nbuffer_store_dwordx4 {vr(HP,4)}, v{vL16}, s[28:31], s50 offen')
    def wsum(v, sdst):
        row16_sum(a, v)
        a.e(f'v_add_f32_dpp v{v}, v{v}, v{v} row_bcast:15 row_mask:0xa bank_mask:0xf')
        a.e(f'v_add_f32_dpp v{v}, v{v}, v{v} row_bcast:31 row_mask:0xc bank_mask:0xf')
        a.e(f'v_readlane_b32 s{sdst}, v{v}, 63')
    a.e(f'v_pk_add_f32 {vr(T4,2)}, {vr(HF,2)}, {vr(HF+2,2)}\nv_pk_add_f32 {vr(T4+2,2)}, {vr(HF+4,2)}, {vr(HF+6,2)}\nv_pk_add_f32 {vr(T4,2)}, {vr(T4,2)}, {vr(T4+2,2)}\nv_add_f32 v{T4}, v{T4}, v{T4+1}')
    wsum(T4, 52)
    a.e(f'v_mov_b32 v{T4}, {f2u(1/512):#x}\nv_mul_f32 v{T4}, s52, v{T4}')
    rnd_bf16(a, T4+4, T4)
    a.e(f'v_sub_f32 v{T4+6}, v{T4}, v{T4+4}')
    for p in range(4):
        a.e(f'v_pk_add_f32 {vr(DD+2*p,2)}, {vr(HF+2*p,2)}, {vr(T4+4,2)} op_sel_hi:[1,0] neg_lo:[0,1] neg_hi:[0,1]')
    a.e(f'v_pk_mul_f32 {vr(T4,2)}, {vr(DD,2)}, {vr(DD,2)}')
    for p in range(1, 4): a.e(f'v_pk_fma_f32 {vr(T4,2)}, {vr(DD+2*p,2)}, {vr(DD+2*p,2)}, {vr(T4,2)}')
    a.e(f'v_add_f32 v{T4}, v{T4}, v{T4+1}')
    pack(a, NP, DD, 4)
    wsum(T4, 52)
    stamp('tail')
    unpack(a, DD, NP, 4)
    a.e(f'v_mov_b32 v{T4}, {f2u(1/512):#x}\nv_mul_f32 v{T4}, s52, v{T4}\nv_fma_f32 v{T4}, -v{T4+6}, v{T4+6}, v{T4}')
    rnd_bf16(a, T4, T4)
    a.e(f'v_add_f32 v{T4}, {f2u(1e-5):#x}, v{T4}')
    rnd_bf16(a, T4, T4)
    a.e(f'v_sqrt_f32 v{T4}, v{T4}')
    rnd_bf16(a, T4, T4)
    a.e(f'v_rcp_f32 v{T4}, v{T4}')
    for p in range(4): a.e(f'v_pk_mul_f32 {vr(DD+2*p,2)}, {vr(DD+2*p,2)}, {vr(T4,2)} op_sel_hi:[1,0]')
    pack(a, NP, DD, 4)
    unpack(a, DD, NP, 4)
    a.e(f's_add_u32 s50, s40, {WS_HN:#x}\nbuffer_store_dwordx4 {vr(NP,4)}, v{vL16}, s[28:31], s50 offen')
    a.e(f'v_pk_mul_f32 {vr(T4,2)}, {vr(DD,2)}, {vr(WF,2)}')
    for p in range(1, 4): a.e(f'v_pk_fma_f32 {vr(T4,2)}, {vr(DD+2*p,2)}, {vr(WF+2*p,2)}, {vr(T4,2)}')
    a.e(f'v_add_f32 v{T4}, v{T4}, v{T4+1}')
    for p in range(4): a.e(f'v_pk_add_f32 {vr(HF+2*p,2)}, {vr(HF+2*p,2)}, {vr(DD+2*p,2)}')
    pack(a, OP, HF, 4)
    a.e(f'buffer_store_dwordx4 {vr(OP,4)}, v{vL16}, s[24:27], s40 offen')
    wsum(T4, 52)
    a.e(f'v_mov_b32 v{T4}, s52')
    rnd_bf16(a, T4, T4)
    a.e(f'v_ashrrev_i32 v{T4+1}, 31, v{T4}\nv_or_b32 v{T4+1}, 0x80000000, v{T4+1}\nv_xor_b32 v{T4}, v{T4}, v{T4+1}\nv_and_b32 v{T4}, 0xffff0000, v{T4}')
    a.e(f's_lshr_b32 s50, s40, 10\ns_sub_u32 s51, 0xffff, s50\nv_or_b32 v{T4}, s51, v{T4}\ns_lshl_b32 s50, s50, 2\ns_add_u32 s50, s50, {WS_KEY:#x}')
    a.e(f's_mov_b64 exec, 1\nbuffer_store_dword v{T4}, off, s[28:31], s50')
    if 'stamp' in OPT:
        stamp('tail')
        a.e('s_waitcnt vmcnt(0)')
        stamp('all')
        a.e('s_memrealtime s[98:99]\ns_waitcnt lgkmcnt(0)\ns_mov_b64 exec, -1\nv_mov_b32 v20, 0')
        for i in range(nst[0]):
            a.e(f's_sub_u32 s50, s{60+2*i}, s60\nv_writelane_b32 v20, s50, {i}')
        a.e(f'v_writelane_b32 v20, s96, 16\nv_writelane_b32 v20, s98, 17')
        a.e(f's_lshr_b32 s50, s40, 3\ns_add_u32 s50, s50, {WS_DBG:#x}\ns_mov_b64 exec, 0xffffffff\nbuffer_store_dword v20, v{vL4}, s[28:31], s50 offen')
    a.e('B_done:\ns_endpgm')
    a.e('B_redo:')
    a.e('s_mov_b32 s33, 1\ns_nop 7\ns_barrier')
    a.e(f'ds_write_b32 v{vL4}, v{Z} offset:{B_FLAG}')
    a.e(f'v_mov_b32 v{NT}, 0x7f800000\nv_mov_b32 v{NT+1}, 0x7f800000\nv_add_u32 v{vT0}, s49, v{vM0}\nds_write_b64 v{vT0}, {vr(NT,2)}')
    a.e(LG0); a.e('s_barrier')
    a.e(f's_mov_b32 s50, 0\nv_mov_b32 v{vT0}, v{vL16}\nv_mov_b32 v{vT1}, v{vM0}')
    a.e('B_mx:')
    a.e(f'ds_read_b128 {vr(Q,4)}, v{vT0} offset:{B_Q}'); a.e(LG0)
    for kt in range(8):
        a.e(f'v_mfma_f32_32x32x16_bf16 {vr(SA,16)}, {vr(K+4*kt,4)}, {vr(Q,4)}, 0')
        maxtree(NT, [SA], kt == 0)
    a.e(f'v_sub_f32 v{NT}, 0, v{NT}')
    a.e(f'ds_min_f32 v{vT1}, v{NT}\nds_min_f32 v{vT1}, v{NT} offset:4')
    a.e(f'v_add_u32 v{vT0}, 1024, v{vT0}\nv_add_u32 v{vT1}, 256, v{vT1}')
    a.e('s_add_u32 s50, s50, 1\ns_cmp_lt_u32 s50, 8\ns_cbranch_scc1 B_mx')
    a.e('s_nop 7\ns_branch B_start')
    return a.L, NV

def top2_wave(a, KR, m1, m2, t0, t1):
    a.e(f'v_max_u32 v{m1}, v{KR}, v{KR+1}\nv_min_u32 v{m2}, v{KR}, v{KR+1}')
    for i in range(2, 32, 2):
        a.e(f'v_med3_u32 v{t0}, v{m1}, v{KR+i}, v{KR+i+1}\nv_max3_u32 v{m1}, v{m1}, v{KR+i}, v{KR+i+1}\nv_max_u32 v{m2}, v{m2}, v{t0}')
    for mod in ['row_ror:8 row_mask:0xf', 'row_ror:4 row_mask:0xf', 'row_ror:2 row_mask:0xf', 'row_ror:1 row_mask:0xf', 'row_bcast:15 row_mask:0xa', 'row_bcast:31 row_mask:0xc']:
        a.e(f'v_mov_b32 v{t0}, 0')
        a.e(f'v_min_u32_dpp v{t0}, v{m1}, v{m1} {mod} bank_mask:0xf')
        a.e(f'v_max_u32_dpp v{m2}, v{m2}, v{m2} {mod} bank_mask:0xf')
        a.e(f'v_max_u32_dpp v{m1}, v{m1}, v{m1} {mod} bank_mask:0xf')
        a.e(f'v_max_u32 v{m2}, v{m2}, v{t0}')

def gen_c1():
    a = Asm()
    W, T, KR, XS, ACC = 40, 32, 72, 104, 8
    a.e('s_cmp_ge_u32 s2, 43\ns_cbranch_scc1 C1_done')
    a.e('s_load_dwordx2 s[10:11], s[0:1], 96\ns_load_dwordx4 s[4:7], s[0:1], 56')
    a.e('v_lshrrev_b32 v1, 6, v0\nv_readfirstlane_b32 s32, v1\nv_and_b32 v1, 63, v0')
    a.e('v_lshlrev_b32 v2, 4, v1\nv_and_b32 v5, 15, v1\nv_lshrrev_b32 v6, 4, v1')
    a.e(f'v_mul_u32_u24 v3, {8*2752}, v6\nv_lshl_add_u32 v3, v5, 2, v3')
    a.e('s_mov_b32 s40, 0x05040100\ns_mov_b32 s41, 0x07060302')
    a.e('s_waitcnt lgkmcnt(0)')
    srd(a, 28, 10, WS_SIZE)
    a.e('s_cmp_lg_u32 s32, 0\ns_cbranch_scc1 C1_nk')
    a.e(f's_mov_b32 s34, {WS_KEY:#x}\ns_mov_b32 s35, {WS_KEY+4096:#x}')
    for q in range(8):
        a.e(f'buffer_load_dwordx4 {vr(KR+4*q,4)}, v2, s[28:31], s{34+q//4} offen offset:{(q%4)*1024}')
    a.e('C1_nk:')
    a.e('s_bitcmp1_b32 s32, 0\ns_cselect_b32 s4, s6, s4\ns_cselect_b32 s5, s7, s5')
    srd(a, 20, 4, 512*2752)
    a.e(f's_lshr_b32 s33, s32, 1\ns_mul_i32 s44, s33, {128*2752}\ns_lshl_b32 s45, s2, 6\ns_add_u32 s44, s44, s45')
    for s in range(4):
        for jp in range(4):
            a.e(f's_add_u32 s45, s44, {(32*s+2*jp)*2752}')
            for j in range(2):
                a.e(f'buffer_load_dword v{W+8*s+2*jp+j}, v3, s[20:23], s45 offen offset:{j*2752}')
    a.e('s_cmp_lg_u32 s32, 0\ns_cbranch_scc1 C1_nt')
    a.e('s_waitcnt vmcnt(32)')
    top2_wave(a, KR, 8, 9, 10, 11)
    a.e('v_mov_b32 v10, 0\ns_mov_b32 exec_lo, 0\ns_mov_b32 exec_hi, 0x80000000\nds_write_b64 v10, v[8:9]')
    a.e('s_cmp_lg_u32 s2, 0\ns_cbranch_scc1 C1_ns')
    a.e(f's_mov_b32 s34, {WS_SEL:#x}\nbuffer_store_dwordx2 v[8:9], off, s[28:31], s34')
    a.e('C1_ns:\ns_mov_b64 exec, -1\ns_waitcnt lgkmcnt(0)')
    a.e('C1_nt:\ns_barrier')
    a.e('v_and_b32 v7, 1, v1\nv_lshlrev_b32 v7, 2, v7\nds_read_b32 v7, v7\ns_waitcnt lgkmcnt(0)')
    a.e('v_and_b32 v7, 0xffff, v7\nv_sub_u32 v7, 0xffff, v7\nv_and_b32 v7, 2047, v7\nv_lshlrev_b32 v7, 10, v7\nv_lshl_add_u32 v7, v6, 4, v7')
    a.e(f's_lshl_b32 s34, s33, 8\ns_add_u32 s34, s34, {WS_HN:#x}')
    for s in range(4):
        a.e(f'buffer_load_dwordx4 {vr(XS+4*s,4)}, v7, s[28:31], s34 offen offset:{s*64}')
    a.e('s_waitcnt vmcnt(4)')
    for s in range(4):
        for e in range(2):
            for p in range(4):
                a.e(f'v_perm_b32 v{T+8*s+4*e+p}, v{W+8*s+2*p+1}, v{W+8*s+2*p}, s{40+e}')
    a.e('s_waitcnt vmcnt(0)')
    for s in range(4):
        for e in range(2):
            a.e(f'v_mfma_f32_16x16x32_bf16 {vr(ACC+4*e,4)}, {vr(T+8*s+4*e,4)}, {vr(XS+4*s,4)}, ' + ('0' if s == 0 else vr(ACC+4*e,4)))
    a.e('s_lshl_b32 s34, s32, 8\nv_lshlrev_b32 v7, 7, v5\nv_lshl_add_u32 v7, v6, 4, v7\nv_add_u32 v7, s34, v7')
    a.e('v_cmp_gt_u32 vcc, 2, v5\ns_and_saveexec_b64 s[36:37], vcc')
    a.e(f'ds_write_b128 v7, {vr(ACC,4)} offset:64\nds_write_b128 v7, {vr(ACC+4,4)} offset:128')
    a.e('s_mov_b64 exec, s[36:37]\ns_waitcnt lgkmcnt(0)\ns_barrier')
    a.e('s_cmp_lg_u32 s32, 0\ns_cbranch_scc1 C1_done')
    a.e('v_lshlrev_b32 v7, 2, v1')
    for w in range(8): a.e(f'ds_read_b32 v{16+w}, v7 offset:{64+w*256}')
    a.e(f'v_lshrrev_b32 v8, 5, v1\nv_mul_u32_u24 v8, 2752, v8\nv_lshl_add_u32 v8, v5, 2, v8\nv_and_b32 v9, 1, v6\nv_lshl_add_u32 v8, v9, 1, v8')
    a.e(f's_lshl_b32 s34, s2, 6\ns_add_u32 s34, s34, {WS_ACT:#x}')
    a.e('s_waitcnt lgkmcnt(0)')
    a.e('v_add_f32 v16, v16, v18\nv_add_f32 v17, v17, v19\nv_add_f32 v20, v20, v22\nv_add_f32 v21, v21, v23\nv_add_f32 v16, v16, v20\nv_add_f32 v17, v17, v21')
    rnd_bf16(a, 16, 16); rnd_bf16(a, 17, 17)
    a.e(f'v_mul_f32 v18, {f2u(-L2E):#x}, v16\nv_exp_f32 v18, v18\nv_add_f32 v18, 1.0, v18\nv_rcp_f32 v18, v18\nv_mul_f32 v16, v16, v18')
    rnd_bf16(a, 16, 16)
    a.e('v_mul_f32 v16, v16, v17\nv_cvt_pk_bf16_f32 v16, v16, v16')
    a.e('buffer_store_short v16, v8, s[28:31], s34 offen')
    a.e('C1_done:\ns_endpgm')
    return a.L

def gen_c2():
    a = Asm()
    W, T, XS, ACC = 40, 32, 64, 8
    a.e('s_cmp_ge_u32 s2, 16\ns_cbranch_scc1 C2_done')
    a.e('s_load_dwordx2 s[10:11], s[0:1], 96\ns_load_dwordx4 s[4:7], s[0:1], 72')
    a.e('v_lshrrev_b32 v1, 6, v0\nv_readfirstlane_b32 s32, v1\nv_and_b32 v1, 63, v0')
    a.e('v_and_b32 v5, 15, v1\nv_lshrrev_b32 v6, 4, v1')
    a.e('v_lshlrev_b32 v3, 13, v6\nv_lshl_add_u32 v3, v5, 2, v3')
    a.e('v_and_b32 v7, 1, v1\nv_mul_u32_u24 v7, 2752, v7\nv_lshl_add_u32 v7, v6, 4, v7')
    a.e('s_mov_b32 s40, 0x05040100\ns_mov_b32 s41, 0x07060302')
    a.e('s_waitcnt lgkmcnt(0)')
    srd(a, 28, 10, WS_SIZE); srd(a, 20, 4, 1376*1024); srd(a, 24, 6, 2097152)
    a.e('s_cmp_lg_u32 s32, 15\ns_cbranch_scc1 C2_w')
    a.e(f'v_lshrrev_b32 v8, 5, v1\nv_lshlrev_b32 v8, 2, v8\ns_mov_b32 s34, {WS_SEL:#x}\nbuffer_load_dword v9, v8, s[28:31], s34 offen\ns_waitcnt vmcnt(0)')
    a.e('v_and_b32 v8, 0xffff, v9\nv_sub_u32 v8, 0xffff, v8\nv_and_b32 v8, 2047, v8\nv_lshlrev_b32 v8, 10, v8\nv_lshl_add_u32 v8, v5, 2, v8\nv_and_b32 v10, 1, v6\nv_lshl_add_u32 v8, v10, 1, v8')
    a.e(f's_lshl_b32 s35, s2, 6\ns_add_u32 s36, s35, {WS_H:#x}\ns_add_u32 s37, s35, {WS_HN:#x}')
    a.e('buffer_load_ushort v10, v8, s[28:31], s36 offen\nbuffer_load_ushort v11, v8, s[28:31], s37 offen')
    a.e('v_and_b32 v9, 0xffff0000, v9\nv_ashrrev_i32 v12, 31, v9\nv_not_b32 v12, v12\nv_or_b32 v12, 0x80000000, v12\nv_xor_b32 v9, v9, v12\nv_and_b32 v9, 0xffff0000, v9')
    a.e(f'v_mul_f32 v9, {f2u(-L2E):#x}, v9\nv_exp_f32 v9, v9\nv_add_f32 v9, 1.0, v9\nv_rcp_f32 v9, v9')
    rnd_bf16(a, 9, 9)
    a.e('s_barrier\nv_lshlrev_b32 v7, 2, v1')
    for w in range(15): a.e(f'ds_read_b32 v{16+w}, v7 offset:{w*256}')
    a.e('s_waitcnt lgkmcnt(0)')
    for st, n in ((8, 7), (4, 4), (2, 2), (1, 1)):
        for w in range(n): a.e(f'v_add_f32 v{16+w}, v{16+w}, v{16+w+st}')
    rnd_bf16(a, 16, 16)
    a.e('v_mul_f32 v16, v16, v9')
    rnd_bf16(a, 16, 16)
    a.e('s_waitcnt vmcnt(0)\nv_lshlrev_b32 v10, 16, v10\nv_lshlrev_b32 v11, 16, v11\nv_add_f32 v16, v16, v11')
    rnd_bf16(a, 16, 16)
    a.e('v_add_f32 v16, v16, v10\nv_cvt_pk_bf16_f32 v16, v16, v16')
    a.e('buffer_store_short v16, v8, s[24:27], s35 offen\ns_endpgm')
    a.e('C2_w:')
    a.e(f's_mul_i32 s33, s32, 3')
    for s in range(3):
        a.e(f's_add_u32 s34, s33, {s}\ns_lshl_b32 s35, s34, 6\ns_add_u32 s35, s35, {WS_ACT:#x}\ns_cmp_lt_u32 s34, 43\ns_cselect_b32 s35, s35, 0x40000000')
        a.e(f'buffer_load_dwordx4 {vr(XS+4*s,4)}, v7, s[28:31], s35 offen')
    a.e('s_lshl_b32 s44, s33, 15\ns_lshl_b32 s45, s2, 6\ns_add_u32 s44, s44, s45')
    for s in range(3):
        for jh in range(2):
            a.e(f's_add_u32 s45, s44, {(32*s+4*jh)*1024}')
            for j in range(4):
                a.e(f'buffer_load_dword v{W+8*s+4*jh+j}, v3, s[20:23], s45 offen offset:{j*1024}')
    for s in range(3):
        a.e(f's_waitcnt vmcnt({16-8*s})')
        for e in range(2):
            for p in range(4):
                a.e(f'v_perm_b32 v{T+8*s+4*e+p}, v{W+8*s+2*p+1}, v{W+8*s+2*p}, s{40+e}')
        for e in range(2):
            a.e(f'v_mfma_f32_16x16x32_bf16 {vr(ACC+4*e,4)}, {vr(T+8*s+4*e,4)}, {vr(XS+4*s,4)}, ' + ('0' if s == 0 else vr(ACC+4*e,4)))
    a.e('s_lshl_b32 s34, s32, 8\nv_lshlrev_b32 v7, 7, v5\nv_lshl_add_u32 v7, v6, 4, v7\nv_add_u32 v7, s34, v7')
    a.e('v_cmp_gt_u32 vcc, 2, v5\ns_and_saveexec_b64 s[36:37], vcc')
    a.e(f'ds_write_b128 v7, {vr(ACC,4)}\nds_write_b128 v7, {vr(ACC+4,4)} offset:64')
    a.e('s_waitcnt lgkmcnt(0)\ns_barrier')
    a.e('C2_done:\ns_endpgm')
    return a.L

def build():
    ref = open('sequential_preLN__grouped_kv_mqa__moe_arch_mod__prompt.s.ref').read().split('\n')
    head = [l for l in ref if l.startswith(';') and '@launch' not in l and 'Override' not in l and 'grid=ceil' not in l]
    bl, bnv = gen_b()
    ks = [('proj_kernel', gen_a(), 256, 256, 512, A_LDS), ('attn_kernel', bl, bnv, 256, 512, B_LDS),
          ('gate_kernel', gen_c1(), 128, 43, 512, 4096), ('down_kernel', gen_c2(), 128, 16, 1024, 4096)]
    for i in range(int(os.environ.get('NEMPTY', '0'))):
        ks.append((f'empty{i}_kernel', ['    s_endpgm'], 8, 1, 64, 0))
    out = head + [f'; @launch kernel={n} grid=({g},1,1) block=({b},1,1) lds={l}' for n, _, _, g, b, l in ks]
    out += ['.amdgcn_target "amdgcn-amd-amdhsa--gfx950"', '.text']
    for n, L, *_ in ks:
        P, added = pad(L)
        print(n, 'instr lines', len(P), 'nops added', added, file=sys.stderr)
        out += header(n) + P
    out += ['.section .rodata,"a"']
    for n, _, nv, *_ in ks:
        out += ['.p2align 6', desc(n, nv)]
    return '\n'.join(out) + '\n'

if __name__ == '__main__':
    dst = sys.argv[1] if len(sys.argv) > 1 else 'sequential_preLN__grouped_kv_mqa__moe_arch_mod__prompt.s'
    open(dst, 'w').write(build())
```

```python
import sys, os
from asmlib import *
OPT = set(os.environ.get('GOPT','').split(','))

WS_Q   = 0x000000
WS_H   = 0x200000
WS_HN  = 0x400000
WS_WOF = 0x600000
WS_K   = 0x680000
WS_VT  = 0x690000
WS_KEY = 0x6B0000
WS_ACT = 0x6C0000
WS_SEL = 0x6C6000
WS_SIZE = 0x800000
import struct
def f2u(x): return struct.unpack('<I', struct.pack('<f', x))[0]
QSCALE = 0.25 * 1.4426950408889634
L2E = 1.4426950408889634
MARGIN = 90.0

def srd(a, d, p, size):
    a.e(f's_mov_b32 s{d}, s{p}\ns_and_b32 s{d+1}, s{p+1}, 0xffff\ns_mov_b32 s{d+2}, {size:#x}\ns_mov_b32 s{d+3}, 0x20000')

def unpack(a, dst, src, n):
    for i in range(n):
        a.e(f'v_lshlrev_b32 v{dst+2*i}, 16, v{src+i}')
        a.e(f'v_and_b32 v{dst+2*i+1}, 0xffff0000, v{src+i}')

def pack(a, dst, src, n):
    for i in range(n):
        a.e(f'v_cvt_pk_bf16_f32 v{dst+i}, v{src+2*i}, v{src+2*i+1}')

def rnd_bf16(a, d, s):
    a.e(f'v_cvt_pk_bf16_f32 v{d}, v{s}, v{s}\nv_and_b32 v{d}, 0xffff0000, v{d}')

def row16_sum(a, v):
    for k in (8, 4, 2, 1):
        a.e(f'v_add_f32_dpp v{v}, v{v}, v{v} row_ror:{k} row_mask:0xf bank_mask:0xf')

def header(name):
    return [f'.globl {name}', '.p2align 8', f'.type {name},@function', f'{name}:']

def desc(name, nv, ns=102):
    return f""".amdhsa_kernel {name}
  .amdhsa_next_free_vgpr {nv}
  .amdhsa_next_free_sgpr {ns}
  .amdhsa_accum_offset {(nv+3)//4*4}
  .amdhsa_group_segment_fixed_size 0
  .amdhsa_kernarg_size 104
  .amdhsa_user_sgpr_count 2
  .amdhsa_user_sgpr_kernarg_segment_ptr 1
  .amdhsa_system_sgpr_workgroup_id_x 1
.end_amdhsa_kernel"""


def merge(main, extras, every, start=0):
    out = []; k = 0
    for i, l in enumerate(main):
        if i >= start and (i - start) % every == 0 and k < len(extras):
            out += extras[k]; k += 1
        out.append(l)
    for g in extras[k:]: out += g
    return out

VT_BLK = 640
A_XROW = 1040
A_NS = 13
A_WQ = 32 * A_XROW
A_KVW = A_WQ + 8 * A_NS * 1024
A_LDS = A_KVW + 16384

WS_DBGA = 0x740000
def gen_a():
    a = Asm()
    nst = [0]
    def stamp():
        if 'stampa' in OPT:
            a.e(f's_memtime s[{72+2*nst[0]}:{73+2*nst[0]}]'); nst[0] += 1
    X, D, WF = 8, 24, 64
    KVF, WOR, WOF_, XF, XKV, TMP = 128, 136, 144, 152, 216, 224
    vL16, vDW, vTR, vI, vG = 2, 3, 4, 5, 6
    a.e('s_cmp_ge_u32 s2, 256\ns_cbranch_scc1 A_done')
    stamp()
    a.e('s_load_dwordx4 s[4:7], s[0:1], 0\ns_load_dwordx4 s[8:11], s[0:1], 16\ns_load_dwordx2 s[12:13], s[0:1], 32\ns_load_dwordx2 s[14:15], s[0:1], 96')
    a.e('v_lshrrev_b32 v1, 6, v0\nv_readfirstlane_b32 s36, v1\nv_and_b32 v1, 63, v0')
    a.e('s_and_b32 s37, s2, 7\ns_lshr_b32 s39, s2, 5\ns_lshl_b32 s39, s39, 3\ns_add_u32 s37, s37, s39   ; tb')
    a.e('s_lshr_b32 s38, s2, 3\ns_and_b32 s38, s38, 3    ; cg')
    a.e(f'v_lshlrev_b32 v{vL16}, 4, v1')
    a.e('s_lshl_b32 s42, s37, 15\ns_lshl_b32 s43, s36, 12\ns_add_u32 s42, s42, s43')
    a.e('s_and_b32 s60, s36, 3            ; c4\ns_lshr_b32 s61, s36, 2           ; kh')
    a.e(f'v_lshrrev_b32 v7, 2, v1\nv_lshlrev_b32 v{vDW}, 10, v7\nv_and_b32 v7, 3, v1\nv_lshl_add_u32 v{vDW}, v7, 4, v{vDW}     ; (l/4)*1024 + (l%4)*16')
    a.e('s_waitcnt lgkmcnt(0)')
    stamp()
    srd(a, 16, 4, 2097152)
    for r in range(4):
        a.e(f'buffer_load_dwordx4 {vr(X+4*r,4)}, v{vL16}, s[16:19], s42 offen offset:{r*1024}')
    srd(a, 20, 6, 524288)
    a.e('s_cmp_lt_u32 s38, 2\ns_cselect_b32 s8, s8, s10\ns_cselect_b32 s9, s9, s11')
    srd(a, 24, 8, 16384); srd(a, 28, 12, 524288); srd(a, 32, 14, WS_SIZE)
    a.e('s_lshl_b32 s44, s61, 18\ns_lshl_b32 s45, s38, 8\ns_add_u32 s44, s44, s45\ns_lshl_b32 s45, s60, 6\ns_add_u32 s44, s44, s45')
    a.e(f's_mul_i32 s46, s36, {A_NS*1024}\ns_add_u32 s46, s46, {A_WQ}')
    a.e(f's_lshl_b32 s47, s36, 11\ns_add_u32 s48, s47, {A_KVW}')
    a.e('s_barrier')
    def dmaw(s):
        return [f's_add_u32 m0, s46, {(s%A_NS)*1024}', f's_add_u32 s45, s44, {s*16384}', f'buffer_load_dwordx4 v{vDW}, s[20:23], s45 offen lds']
    NE = 8
    for s in range(NE):
        for l in dmaw(s): a.e(l)
    a.e(f'v_and_b32 v{vI}, 15, v1\nv_lshrrev_b32 v{vG}, 4, v1')
    a.e(f'v_lshrrev_b32 v7, 5, v1\nv_bfe_u32 v{vTR}, v1, 2, 2\nv_lshl_add_u32 v{vTR}, v7, 3, v{vTR}\nv_lshlrev_b32 v{vTR}, 6, v{vTR}')
    a.e(f'v_and_b32 v7, 1, v{vG}\nv_xor_b32 v7, s61, v7\nv_lshl_add_u32 v{vTR}, v7, 5, v{vTR}\nv_and_b32 v7, 3, v1\nv_lshl_add_u32 v{vTR}, v7, 3, v{vTR}\nv_add_u32 v{vTR}, s46, v{vTR}')
    def trw(s): return [f'ds_read_b64_tr_b16 {vr(WF+4*s+2*hf,2)}, v{vTR} offset:{(s%A_NS)*1024+hf*256}' for hf in range(2)]
    stamp()
    a.e(f's_waitcnt vmcnt({NE})')
    stamp()
    b = Asm()
    for r in range(4): unpack(b, D+8*r, X+4*r, 4)
    for r in range(4):
        d = D+8*r; t = TMP+4*r
        b.e(f'v_pk_add_f32 {vr(t,2)}, {vr(d,2)}, {vr(d+2,2)}\nv_pk_add_f32 {vr(t+2,2)}, {vr(d+4,2)}, {vr(d+6,2)}')
    for r in range(4):
        t = TMP+4*r
        b.e(f'v_pk_add_f32 {vr(t,2)}, {vr(t,2)}, {vr(t+2,2)}')
    for r in range(4):
        t = TMP+4*r
        b.e(f'v_add_f32 v{t}, v{t}, v{t+1}')
    def red4():
        t0, t1, t2, t3 = TMP, TMP+4, TMP+8, TMP+12
        b.e(f'v_permlane32_swap_b32 v{t0}, v{t1}\nv_permlane32_swap_b32 v{t2}, v{t3}')
        b.e(f'v_add_f32 v{t0}, v{t0}, v{t1}\nv_add_f32 v{t2}, v{t2}, v{t3}')
        b.e(f'v_permlane16_swap_b32 v{t0}, v{t2}\nv_add_f32 v{t0}, v{t0}, v{t2}')
        row16_sum(b, t0)
    red4()
    LN = [0, 32, 16, 48]
    b.e(f'v_mul_f32 v{TMP}, {f2u(1/512):#x}, v{TMP}     ; mean')
    rnd_bf16(b, TMP+1, TMP)
    b.e(f'v_sub_f32 v7, v{TMP}, v{TMP+1}')
    for r in range(4): b.e(f'v_readlane_b32 s{64+2*r}, v{TMP+1}, {LN[r]}')
    for r in range(4):
        for p in range(4):
            d = D+8*r+2*p
            b.e(f'v_pk_add_f32 {vr(d,2)}, {vr(d,2)}, s[{64+2*r}:{65+2*r}] op_sel_hi:[1,0] neg_lo:[0,1] neg_hi:[0,1]')
    for r in range(4):
        d = D+8*r; t = TMP+4*r
        b.e(f'v_pk_mul_f32 {vr(t,2)}, {vr(d,2)}, {vr(d,2)}')
    for p in range(1, 4):
        for r in range(4):
            d = D+8*r+2*p; t = TMP+4*r
            b.e(f'v_pk_fma_f32 {vr(t,2)}, {vr(d,2)}, {vr(d,2)}, {vr(t,2)}')
    for r in range(4):
        t = TMP+4*r
        b.e(f'v_add_f32 v{t}, v{t}, v{t+1}')
    n1 = len(b.L)
    red4()
    b.e(f'v_mul_f32 v{TMP}, {f2u(1/512):#x}, v{TMP}')
    b.e(f'v_fma_f32 v{TMP}, -v7, v7, v{TMP}       ; var')
    for r in range(2): pack(b, X+4*r, D+8*r, 4)
    rnd_bf16(b, TMP, TMP)
    b.e(f'v_add_f32 v{TMP}, {f2u(1e-5):#x}, v{TMP}')
    rnd_bf16(b, TMP, TMP)
    b.e(f'v_sqrt_f32 v{TMP}, v{TMP}')
    pack(b, X+8, D+16, 4)
    rnd_bf16(b, TMP, TMP)
    b.e(f'v_rcp_f32 v{TMP}, v{TMP}')
    pack(b, X+12, D+24, 4)
    for r in range(4): b.e(f'v_readlane_b32 s{64+2*r}, v{TMP}, {LN[r]}')
    for r in range(4): unpack(b, D+8*r, X+4*r, 4)
    b.e(f's_mul_i32 s49, s36, {4*A_XROW}\nv_add_u32 v7, s49, v{vL16}')
    for r in range(4):
        for p in range(4):
            d = D+8*r+2*p
            b.e(f'v_pk_mul_f32 {vr(d,2)}, {vr(d,2)}, s[{64+2*r}:{65+2*r}] op_sel_hi:[1,0]')
        pack(b, X+4*r, D+8*r, 4)
        b.e(f'ds_write_b128 v7, {vr(X+4*r,4)} offset:{r*A_XROW}')
    kvd = [[f's_mov_b32 m0, s48', 's_nop 0', f'buffer_load_dwordx4 v{vL16}, s[24:27], s47 offen lds'], [f'buffer_load_dwordx4 v{vL16}, s[24:27], s47 offen offset:1024 lds']]
    ex1 = [dmaw(s) for s in range(NE, A_NS)] + kvd
    ex2 = [['s_waitcnt vmcnt(12)'] + trw(0) + trw(1) + trw(2), [], ['s_waitcnt lgkmcnt(0)'] + dmaw(13), dmaw(14), dmaw(15)]
    ind = lambda G: [['    ' + x for x in g] for g in G]
    a.L += merge(b.L[:n1], ind(ex1), 14, 4) + merge(b.L[n1:], ind(ex2), 14, 0)
    stamp()
    a.e('s_cmp_lg_u32 s36, 7\ns_cbranch_scc1 A_nowo1')
    a.e(f'v_lshlrev_b32 v7, 13, v{vG}\nv_lshl_add_u32 v7, v{vI}, 2, v7')
    a.e('s_lshr_b32 s62, s2, 4\ns_lshl_b32 s62, s62, 15\ns_and_b32 s63, s2, 15\ns_lshl_b32 s63, s63, 6\ns_add_u32 s62, s62, s63\ns_add_u32 s63, s62, 4096')
    for j in range(8):
        a.e(f'buffer_load_dword v{WOR+j}, v7, s[28:31], s{62+j//4} offen offset:{(j%4)*1024}')
    a.e('A_nowo1:')
    vXA, vXK, vTK = TMP+4, TMP+5, TMP+6
    a.e(f'v_and_b32 v7, 31, v1\nv_mul_u32_u24 v{vXA}, {A_XROW}, v7\nv_lshrrev_b32 v7, 5, v1\nv_lshl_add_u32 v{vXA}, v7, 4, v{vXA}\ns_lshl_b32 s49, s61, 9\nv_add_u32 v{vXA}, s49, v{vXA}')
    a.e(f'v_mul_u32_u24 v{vXK}, {A_XROW}, v{vI}\nv_lshl_add_u32 v{vXK}, v{vG}, 4, v{vXK}')
    a.e(f's_and_b32 s49, s38, 1\ns_mul_i32 s49, s49, {16*A_XROW}\ns_lshl_b32 s50, s36, 7\ns_add_u32 s49, s49, s50\nv_add_u32 v{vXK}, s49, v{vXK}')
    a.e(f'v_lshlrev_b32 v{vTK}, 8, v{vG}\nv_lshl_add_u32 v{vTK}, v{vI}, 3, v{vTK}\nv_add_u32 v{vTK}, s48, v{vTK}     ; g*256 + r*32 + c*8')
    a.e('s_waitcnt vmcnt(3)')
    stamp()
    for s in range(3, 9):
        for l in trw(s): a.e(l)
    a.e('s_waitcnt lgkmcnt(0)\ns_barrier' if 'stampa' in OPT else 's_waitcnt lgkmcnt(12)\ns_barrier')
    stamp()
    if 'stampa' in OPT: a.e('s_waitcnt lgkmcnt(0)')
    for s in range(9, 13):
        for l in trw(s): a.e(l)
    ACC, ACCKV, EXR = 8, 24, 28
    def xr(s): return f'ds_read_b128 {vr(XF+4*s,4)}, v{vXA} offset:{s*32}'
    def mm(s): return f'v_mfma_f32_32x32x16_bf16 {vr(ACC,16)}, {vr(WF+4*s,4)}, {vr(XF+4*s,4)}, ' + ('0' if s == 0 else vr(ACC,16))
    for s in range(6): a.e(xr(s))
    for s in range(10):
        a.e(f's_waitcnt lgkmcnt(5)'); a.e(mm(s)); a.e(xr(s+6))
    for sp in range(2):
        for hf in range(2): a.e(f'ds_read_b64_tr_b16 {vr(KVF+4*sp+2*hf,2)}, v{vTK} offset:{sp*1024+hf*128}')
        a.e(f'ds_read_b128 {vr(XKV+4*sp,4)}, v{vXK} offset:{sp*64}')
    a.e('s_waitcnt lgkmcnt(9)')
    for s in range(10, 13): a.e(mm(s))
    a.e('s_waitcnt vmcnt(0)')
    for s in range(13, 16):
        for l in trw(s): a.e(l)
    a.e('s_waitcnt lgkmcnt(6)')
    a.e('s_cmp_lt_u32 s38, 2\ns_cbranch_scc0 A_v')
    a.e(f'v_mfma_f32_16x16x32_bf16 {vr(ACCKV,4)}, {vr(KVF,4)}, {vr(XKV,4)}, 0')
    a.e(f'v_mfma_f32_16x16x32_bf16 {vr(ACCKV,4)}, {vr(KVF+4,4)}, {vr(XKV+4,4)}, {vr(ACCKV,4)}')
    a.e('s_branch A_kvj\nA_v:')
    a.e(f'v_mfma_f32_16x16x32_bf16 {vr(ACCKV,4)}, {vr(XKV,4)}, {vr(KVF,4)}, 0')
    a.e(f'v_mfma_f32_16x16x32_bf16 {vr(ACCKV,4)}, {vr(XKV+4,4)}, {vr(KVF+4,4)}, {vr(ACCKV,4)}')
    a.e('A_kvj:')
    a.e('s_waitcnt lgkmcnt(0)')
    for s in range(13, 16): a.e(mm(s))
    stamp()
    a.e(f's_xor_b32 s49, s36, 4\ns_mul_i32 s49, s49, {A_NS*1024}\ns_add_u32 s49, s49, {A_WQ}')
    a.e(f'v_add_u32 v{TMP+4}, s46, v{vL16}\nv_add_u32 v{TMP+5}, s49, v{vL16}\nv_add_u32 v{TMP+6}, s48, v{vL16}')
    a.e(f'ds_write_b128 v{TMP+6}, {vr(ACCKV,4)}')
    a.e('v_bfe_u32 v7, v1, 3, 2\nv_lshlrev_b32 v7, 13, v7\nv_lshrrev_b32 v0, 5, v1\nv_lshl_add_u32 v7, v0, 9, v7\nv_and_b32 v0, 7, v1\nv_lshl_add_u32 v7, v0, 4, v7')
    a.e('s_lshl_b32 s49, s60, 1\ns_add_u32 s49, s49, s61\ns_and_b32 s50, s49, 3\ns_lshl_b32 s50, s50, 7\ns_lshr_b32 s49, s49, 2\ns_lshl_b32 s51, s38, 1\ns_add_u32 s49, s49, s51\ns_lshl_b32 s49, s49, 10\ns_add_u32 s49, s49, s50\ns_lshl_b32 s50, s37, 15\ns_add_u32 s49, s49, s50')
    if WS_Q: a.e(f's_add_u32 s49, s49, {WS_Q:#x}')
    a.e(f's_mov_b32 s64, {f2u(QSCALE):#x}')
    a.e(f'ds_write_b128 v{TMP+4}, {vr(ACC+8,4)}\nds_write_b128 v{TMP+4}, {vr(ACC+12,4)} offset:1024')
    a.e('s_waitcnt lgkmcnt(0)\ns_barrier')
    stamp()
    a.e(f'ds_read_b128 {vr(EXR,4)}, v{TMP+5}\nds_read_b128 {vr(EXR+4,4)}, v{TMP+5} offset:1024')
    a.e('s_cmp_lg_u32 s36, 0\ns_cbranch_scc1 A_nokv1')
    for w in range(8):
        a.e(f'ds_read_b128 {vr(XF+4*w,4)}, v{TMP+6} offset:{w*2048}')
    a.e('A_nokv1:')
    a.e('s_waitcnt lgkmcnt(0)')
    for p in range(4):
        a.e(f'v_pk_add_f32 {vr(ACC+2*p,2)}, {vr(ACC+2*p,2)}, {vr(EXR+2*p,2)}')
    pack(a, EXR, ACC, 4)
    unpack(a, ACC, EXR, 4)
    for p in range(4):
        a.e(f'v_pk_mul_f32 {vr(ACC+2*p,2)}, {vr(ACC+2*p,2)}, s[64:65] op_sel_hi:[1,0]')
    pack(a, EXR, ACC, 4)
    a.e(f'buffer_store_dwordx4 {vr(EXR,4)}, v7, s[32:35], s49 offen')
    if 'stampa' in OPT:
        stamp(); a.e('s_waitcnt vmcnt(0)'); stamp()
        a.e('s_waitcnt lgkmcnt(0)\nv_mov_b32 v40, 0\nv_lshlrev_b32 v41, 2, v1')
        for i in range(nst[0]):
            a.e(f's_sub_u32 s50, s{72+2*i}, s72\nv_writelane_b32 v40, s50, {i}')
        a.e(f's_lshl_b32 s50, s2, 3\ns_add_u32 s50, s50, s36\ns_lshl_b32 s50, s50, 7\ns_add_u32 s50, s50, {WS_DBGA:#x}\ns_mov_b64 exec, 0xffffffff\nbuffer_store_dword v40, v41, s[32:35], s50 offen\ns_mov_b64 exec, -1')
    a.e('s_cmp_eq_u32 s36, 7\ns_cbranch_scc1 A_wo2\ns_cmp_eq_u32 s36, 6\ns_cbranch_scc1 A_rst\ns_cmp_lg_u32 s36, 0\ns_cbranch_scc1 A_done')
    for st in (4, 2, 1):
        for w in range(st):
            for p in range(2):
                a.e(f'v_pk_add_f32 {vr(XF+4*w+2*p,2)}, {vr(XF+4*w+2*p,2)}, {vr(XF+4*(w+st)+2*p,2)}')
    pack(a, XF+4, XF, 2)
    a.e('s_and_b32 s48, s38, 1\ns_cmp_lt_u32 s38, 2\ns_cbranch_scc0 A_vst')
    a.e(f'v_and_b32 v7, 1, v{vG}\nv_lshlrev_b32 v7, 9, v7\nv_lshl_add_u32 v7, v{vI}, 4, v7\nv_lshrrev_b32 v0, 1, v{vG}\nv_lshl_add_u32 v7, v0, 3, v7')
    a.e(f's_lshl_b32 s47, s37, 10\ns_lshl_b32 s48, s48, 8\ns_add_u32 s47, s47, s48\ns_add_u32 s47, s47, {WS_K:#x}')
    a.e(f'buffer_store_dwordx2 {vr(XF+4,2)}, v7, s[32:35], s47 offen\ns_endpgm')
    a.e('A_vst:')
    a.e(f'v_lshrrev_b32 v7, 1, v{vG}\nv_mul_u32_u24 v7, {VT_BLK//2}, v7\nv_lshl_add_u32 v7, v{vI}, 4, v7\nv_and_b32 v0, 1, v{vG}\nv_lshl_add_u32 v7, v0, 3, v7')
    a.e(f's_lshl_b32 s47, s37, 1\ns_add_u32 s47, s47, s48\ns_mul_i32 s47, s47, {VT_BLK}\ns_add_u32 s47, s47, {WS_VT:#x}')
    a.e(f'buffer_store_dwordx2 {vr(XF+4,2)}, v7, s[32:35], s47 offen')
    a.e(f'v_mov_b32 v{XF}, 0x3f803f80\nv_mov_b32 v{XF+1}, 0x3f803f80\ns_mov_b32 exec_lo, 0x10001\ns_mov_b32 exec_hi, 0x10001')
    a.e(f'buffer_store_dwordx2 {vr(XF,2)}, v7, s[32:35], s47 offen offset:256\ns_endpgm')
    a.e('A_wo2:')
    a.e('s_mov_b32 s40, 0x05040100\ns_mov_b32 s41, 0x07060302')
    for e in range(2):
        for p in range(4):
            a.e(f'v_perm_b32 v{WOF_+4*e+p}, v{WOR+2*p+1}, v{WOR+2*p}, s{40+e}')
    a.e('s_lshr_b32 s62, s2, 5\ns_lshl_b32 s62, s62, 13\ns_bfe_u32 s63, s2, 0x30001\ns_lshl_b32 s63, s63, 16\ns_add_u32 s62, s62, s63')
    a.e('s_bfe_u32 s63, s2, 0x10004\ns_lshl_b32 s63, s63, 12\ns_add_u32 s62, s62, s63\ns_and_b32 s63, s2, 1\ns_lshl_b32 s63, s63, 11\ns_add_u32 s62, s62, s63')
    a.e(f's_add_u32 s62, s62, {WS_WOF:#x}')
    a.e(f'buffer_store_dwordx4 {vr(WOF_,4)}, v{vL16}, s[32:35], s62 offen\nbuffer_store_dwordx4 {vr(WOF_+4,4)}, v{vL16}, s[32:35], s62 offen offset:1024\ns_endpgm')
    a.e('A_rst:')
    a.e('s_cmp_ge_u32 s2, 70\ns_cbranch_scc1 A_done')
    a.e(f's_cmp_ge_u32 s2, 64\ns_cselect_b32 s47, -1, 0\ns_lshl_b32 s48, s2, 10\ns_add_u32 s48, s48, {WS_KEY:#x}')
    for i in range(4): a.e(f'v_mov_b32 v{XF+i}, s47')
    a.e(f'buffer_store_dwordx4 {vr(XF,4)}, v{vL16}, s[32:35], s48 offen')
    a.e('A_done:\ns_endpgm')
    return a.L

B_PSZ = 17408
B_SUM, B_M0, B_O, B_Q, B_WO = 0, 34816, 38912, 40960, 49152
NSLOT = 12
B_FLAG = B_WO + 8 * NSLOT * 1024
B_CAND, B_RED = B_FLAG + 64, B_FLAG + 256
B_LDS = B_RED + 2048
B_AROW = 2064
WS_DBG = 0x700000
SPIN = 1 << 20
POLLW = 0
KSH = int(os.environ.get('KSH', '7'))
SLEEP = int(os.environ.get('SLEEP', '2'))

def gen_b():
    a = Asm()
    nst = [0]
    def stamp(grp='stamp'):
        if 'stamp' in OPT and (grp == 'all' or (grp == 'stamp' and 'sttail' not in OPT and 'stffn' not in OPT) or (grp == 'tail' and 'sttail' in OPT) or (grp == 'ffn' and 'stffn' in OPT)):
            a.e(f's_memtime s[{64+2*nst[0]}:{65+2*nst[0]}]'); nst[0] += 1
    vN16, vJ, vL16, vOw, vN, vOr, vWO, vIDX, vT0, vT1 = 0, 2, 3, 5, 6, 7, 8, 9, 10, 11
    CHK0, CHK1, vPw, vLw = 12, 13, 14, 15
    K, V = 16, 48
    Q, Z, C, SA, SB, OA, OB, OUT, WOT, LT, OF, XR, WR = 112, 116, 120, 136, 152, 168, 184, 200, 216, 232, 240, 248, 252
    NV = 256
    vPF = OUT
    vV, vST, vHI = 4, 8, 2
    LG0 = 's_waitcnt lgkmcnt(0)'
    a.e('s_cmp_ge_u32 s2, 256\ns_cbranch_scc1 B_done')
    stamp('all')
    if 'stamp' in OPT: a.e('s_memrealtime s[96:97]')
    a.e('s_load_dwordx2 s[10:11], s[0:1], 96\ns_load_dwordx2 s[4:5], s[0:1], 0\ns_load_dwordx4 s[12:15], s[0:1], 48\ns_load_dwordx4 s[60:63], s[0:1], 64\ns_load_dwordx2 s[8:9], s[0:1], 80')
    a.e('v_lshrrev_b32 v1, 6, v0\nv_readfirstlane_b32 s32, v1\nv_and_b32 v1, 63, v0')
    a.e(f'v_lshlrev_b32 v{vL16}, 4, v1')
    a.e(f's_lshl_b32 s34, s2, 13\ns_lshl_b32 s48, s32, 10\ns_add_u32 s40, s48, s34      ; (8b + w)*1024')
    a.e(f's_lshl_b32 s36, s32, 13\ns_add_u32 s36, s36, {WS_K:#x}\ns_add_u32 s37, s36, 4096')
    a.e(f's_add_u32 s35, s40, {WS_Q:#x}')
    n, h2 = SA, SA+1
    a.e(f'v_and_b32 v{n}, 31, v1\nv_lshrrev_b32 v{h2}, 5, v1\nv_lshlrev_b32 v{vN16}, 4, v{n}')
    a.e(LG0)
    srd(a, 28, 10, WS_SIZE)
    vm = []
    def wv(tag): return ('W', tag)
    def emit(l):
        if isinstance(l, tuple):
            if l[0] == 'W':
                k = len(vm) - 1 - vm.index(l[1])
                a.e(f's_waitcnt vmcnt({min(k,63)})')
            else:
                vm.append(l[1]); a.e(l[2])
        else: a.e(l)
    def ldK(kt): return ('V', ('K', kt), f'buffer_load_dwordx4 {vr(K+4*kt,4)}, v{vL16}, s[28:31], s{36+kt//4} offen offset:{(kt%4)*1024}')
    def ldV(bl): return ('V', ('V', bl), f'buffer_load_dwordx4 {vr(V+4*bl,4)}, v{vV}, s[28:31], s{[38,39,47][bl//6]} offen offset:{(bl%6)*VT_BLK}')
    emit(('V', ('Q', 0), f'buffer_load_dwordx4 {vr(Q,4)}, v{vL16}, s[28:31], s35 offen'))
    emit(ldK(0)); emit(ldK(1))
    a.e(f'v_mul_u32_u24 v{vT0}, {VT_BLK//2}, v{h2}\nv_add_u32 v{vV}, v{vT0}, v{vN16}\nv_add_u32 v{vT0}, 256, v{vT0}\nv_mov_b32 v{vT1}, 0x40000000')
    a.e(f'v_cmp_eq_u32 vcc, 20, v{n}\nv_cndmask_b32 v{vT1}, v{vT1}, v{vT0}, vcc\nv_cmp_gt_u32 vcc, 17, v{n}\nv_cndmask_b32 v{vV}, v{vT1}, v{vV}, vcc')
    a.e(f's_mul_i32 s38, s32, {16*VT_BLK}\ns_add_u32 s38, s38, {WS_VT:#x}\ns_add_u32 s39, s38, {6*VT_BLK}\ns_add_u32 s47, s38, {12*VT_BLK}')
    srd(a, 16, 4, 2097152); srd(a, 20, 12, 1024); srd(a, 24, 8, 2097152)
    a.e(f's_lshl_b32 s41, s32, 16\ns_add_u32 s41, s41, {WS_WOF:#x}\ns_mul_i32 s42, s32, {NSLOT*1024}\ns_add_u32 s42, s42, {B_WO}')
    a.e('s_mov_b32 s33, 0')
    a.e('s_and_b32 s44, s2, 7\ns_lshr_b32 s45, s2, 3\ns_mul_i32 s55, s44, 6\ns_add_u32 s55, s55, s45\ns_mov_b32 s54, 0')
    a.e('s_cmp_lt_u32 s45, 6\ns_cselect_b32 s46, s55, 99\ns_cmp_lt_u32 s46, 43\ns_cselect_b32 s54, 1, 0')
    a.e('s_bitcmp1_b32 s32, 0\ns_cselect_b32 s14, s60, s14\ns_cselect_b32 s15, s61, s15')
    a.e('s_cmp_eq_u32 s32, 2\ns_cselect_b32 s4, s62, s14\ns_cselect_b32 s5, s63, s15')
    srd(a, 4, 4, 512*2752)
    a.e(f's_lshl_b32 s46, s45, 6\nv_add_u32 v{vT0}, s46, v1\nv_lshrrev_b32 v{vPF}, 2, v{vT0}\nv_mul_u32_u24 v{vPF}, 2752, v{vPF}\nv_and_b32 v{vT1}, 3, v1\nv_lshlrev_b32 v{vT1}, 7, v{vT1}\nv_min_u32 v{vT1}, 380, v{vT1}\nv_add_u32 v{vPF}, v{vPF}, v{vT1}')
    a.e(f'v_lshlrev_b32 v{vT0}, 10, v{vT0}\ns_mul_i32 s50, s44, 384\ns_lshl_b32 s51, s44, 7\ns_cmp_eq_u32 s32, 2\ns_cselect_b32 s50, s51, s50\ns_cselect_b64 vcc, -1, 0\ns_cmp_gt_u32 s32, 2\ns_cselect_b32 s12, 0x40000000, s50\nv_cndmask_b32 v{vPF}, v{vPF}, v{vT0}, vcc')
    a.e(f's_lshr_b32 s46, s32, 1\ns_mul_i32 s53, s46, {128*2752}\ns_mov_b32 s52, 2752')
    a.e('s_lshr_b32 s46, s2, 4\ns_cmp_eq_u32 s46, 4\ns_cbranch_scc0 B_nd')
    a.e(f's_mov_b32 s54, 2\ns_lshl_b32 s55, s44, 1\ns_and_b32 s45, s45, 1\ns_add_u32 s55, s55, s45\ns_mov_b32 s14, s62\ns_mov_b32 s15, s63\ns_mul_i32 s53, s32, {192*1024}\ns_movk_i32 s52, 1024')
    a.e('B_nd:')
    srd(a, 56, 14, 512*2752)
    a.e('s_lshl_b32 s46, s55, 6\ns_add_u32 s53, s53, s46\ns_cmp_eq_u32 s54, 0\ns_cselect_b32 s53, 0x40000000, s53')
    a.e('s_and_b32 s44, s32, 3       ; j')
    a.e(f'v_lshrrev_b32 v{vT0}, 3, v{n}\nv_lshlrev_b32 v{vOw}, 8, v{vT0}\nv_and_b32 v{vT0}, 7, v{n}\nv_lshl_add_u32 v{vOw}, v{vT0}, 4, v{vOw}\nv_lshl_add_u32 v{vOw}, v{h2}, 3, v{vOw}')
    a.e(f's_lshr_b32 s45, s44, 1\ns_lshl_b32 s45, s45, 7\ns_and_b32 s46, s44, 1\ns_lshl_b32 s46, s46, 2\ns_add_u32 s45, s45, s46\nv_add_u32 v{vOw}, s45, v{vOw}')
    a.e(f's_lshl_b32 s45, s44, 12\nv_add_u32 v{vN}, s45, v{vL16}')
    a.e(f's_lshr_b32 s45, s32, 1\ns_lshl_b32 s45, s45, 10\ns_and_b32 s46, s32, 1\ns_lshl_b32 s46, s46, 3\ns_add_u32 s45, s45, s46\nv_add_u32 v{vPw}, s45, v{vL16}')
    a.e(f's_lshr_b32 s45, s32, 2\ns_lshl_b32 s45, s45, 9\ns_lshl_b32 s46, s44, 2\ns_add_u32 s45, s45, s46\nv_add_u32 v{vLw}, s45, v{vN16}')
    a.e(f'v_and_b32 v{vOr}, 7, v1\nv_lshlrev_b32 v{vOr}, 4, v{vOr}\nv_lshrrev_b32 v{vT0}, 4, v1\nv_lshl_add_u32 v{vOr}, v{vT0}, 7, v{vOr}')
    a.e(f'v_lshrrev_b32 v{vST}, 2, v1\nv_mul_lo_u32 v{vST}, s52, v{vST}\nv_and_b32 v{vT1}, 3, v1\nv_lshl_add_u32 v{vST}, v{vT1}, 4, v{vST}\nv_mov_b32 v{vHI}, {B_FLAG}')
    a.e(f'v_mov_b32 v{vIDX}, 0xdddd')
    for i in range(4): a.e(f'v_mov_b32 v{Z+i}, 0')
    a.e(f's_lshl_b32 s49, s32, 9')
    a.e(f'v_add_u32 v{vT0}, s48, v{vL16}\nv_add_u32 v{vT1}, s49, v{vN16}')
    stamp()
    emit(wv(('K', 1)))
    stamp()
    NT = WOT
    a.e(f'v_mfma_f32_32x32x16_bf16 {vr(SA,16)}, {vr(K,4)}, {vr(Q,4)}, 0')
    a.e(f'v_mfma_f32_32x32x16_bf16 {vr(SB,16)}, {vr(K+4,4)}, {vr(Q,4)}, 0')
    a.e(f'ds_write_b128 v{vT0}, {vr(Q,4)} offset:{B_Q}')
    for l in [ldV(0), ldV(1), ldK(2)]: emit(l)
    def maxtree(dst, bases, first):
        regs = [b+i for b in bases for i in range(16)]
        if first:
            a.e(f'v_max_f32 v{dst}, v{regs[0]}, v{regs[1]}'); regs = regs[2:]
        for i in range(0, len(regs), 2):
            a.e(f'v_max3_f32 v{dst}, v{dst}, v{regs[i]}, v{regs[i+1]}')
    for i in range(5): a.e(f'v_max3_f32 v{NT+i}, v{SA+3*i}, v{SA+3*i+1}, v{SA+3*i+2}')
    for i in range(5): a.e(f'v_max3_f32 v{NT+i}, v{NT+i}, v{SB+2*i}, v{SB+2*i+1}')
    for i in range(3): a.e(f'v_max3_f32 v{NT+i}, v{NT+i}, v{SB+10+2*i}, v{SB+11+2*i}')
    a.e(f'v_max3_f32 v{NT+3}, v{NT+3}, v{NT+4}, v{SA+15}\nv_max3_f32 v{NT}, v{NT}, v{NT+1}, v{NT+2}\nv_max_f32 v{NT}, v{NT}, v{NT+3}')
    a.e(f'v_mov_b32 v{NT+1}, v{NT}\nv_permlane32_swap_b32 v{NT}, v{NT+1}\nv_max_f32 v{NT+4}, v{NT}, v{NT+1}')
    for i in range(4): a.e(f'v_sub_f32 v{NT+i}, {f2u(-MARGIN):#x}, v{NT+4}')
    a.e(f'ds_write_b128 v{vT1}, {vr(NT,4)} offset:{B_M0}')
    for l in [ldV(2), ldV(3), ldK(3)]: emit(l)
    a.e('B_start:')
    a.e(f'v_mov_b32 v{CHK0}, 0\nv_mov_b32 v{CHK1}, 0x7f800000')
    a.e(f'v_mfma_f32_32x32x16_bf16 {vr(OA,16)}, {vr(Z,4)}, {vr(Z,4)}, 0\nv_mfma_f32_32x32x16_bf16 {vr(OB,16)}, {vr(Z,4)}, {vr(Z,4)}, 0')
    a.e(LG0 + '\ns_barrier')
    def ldCQ(u):
        return [f'ds_read_b128 {vr(Q,4)}, v{vL16} offset:{B_Q+u*1024}'] + [f'ds_read_b128 {vr(C+4*i,4)}, v{vN16} offset:{B_M0+u*512}' for i in range(4)]
    def QK(kt): return f'v_mfma_f32_32x32x16_bf16 {vr(SA if kt%2==0 else SB,16)}, {vr(K+4*kt,4)}, {vr(Q,4)}, {vr(C,16)}'
    def acc(u): return OA if u%2==0 else OB
    def PV(u, kt, hf):
        s = (SA if kt%2==0 else SB) + 8*hf
        return f'v_smfmac_f32_32x32x32_bf16 {vr(acc(u),16)}, {vr(V+8*kt+4*hf,4)}, {vr(s,8)}, v{vIDX}'
    def parts(u):
        o = acc(u); b = B_SUM + (u%2)*B_PSZ
        return [f'ds_write_b64 v{vPw}, {vr(o+2*j,2)} offset:{b+j*4096}' for j in range(4)] + [f'ds_write_b32 v{vLw}, v{o+8} offset:{b+16384}']
    def zero(u): return [f'v_mfma_f32_32x32x16_bf16 {vr(acc(u),16)}, {vr(Z,4)}, {vr(Z,4)}, 0']
    lab = [0]
    def cond(test, L):
        lab[0] += 1
        return test(f'B_r{lab[0]}') + ['; @opt_begin'] + L + ['; @opt_end', f'B_r{lab[0]}:']
    def role(L): return cond(lambda t: ['s_cmp_lt_u32 s32, 4', f's_cbranch_scc1 {t}'], L)
    def firstonly(L): return cond(lambda t: ['s_cmp_lg_u32 s33, 0', f's_cbranch_scc1 {t}'], L)
    def norm_rd(u):
        b = B_SUM + (u%2)*B_PSZ; P = acc(u)
        return [f'ds_read_b128 {vr(LT+4*i,4)}, v{vN16} offset:{b+16384+512*i}' for i in range(2)] + \
               [f'ds_read_b128 {vr(P+4*i,4)}, v{vN} offset:{b+1024*i}' for i in range(4)]
    def norm_do(u):
        P = acc(u); Lr = LT
        L = [f'v_pk_add_f32 {vr(Lr,2)}, {vr(Lr,2)}, {vr(Lr+2,2)}', f'v_pk_add_f32 {vr(Lr+4,2)}, {vr(Lr+4,2)}, {vr(Lr+6,2)}']
        L += [f'v_pk_add_f32 {vr(P+4*i,2)}, {vr(P+4*i,2)}, {vr(P+4*i+2,2)}' for i in range(4)]
        L += [f'v_pk_add_f32 {vr(Lr,2)}, {vr(Lr,2)}, {vr(Lr+4,2)}']
        L += [f'v_pk_add_f32 {vr(P,2)}, {vr(P,2)}, {vr(P+4,2)}', f'v_add_f32 v{Lr}, v{Lr}, v{Lr+1}', f'v_pk_add_f32 {vr(P+8,2)}, {vr(P+8,2)}, {vr(P+12,2)}']
        L += [f'v_rcp_f32 v{Lr+2}, v{Lr}', f'v_pk_add_f32 {vr(P,2)}, {vr(P,2)}, {vr(P+8,2)}',
              f'v_maximum3_f32 v{Lr+1}, |v{P}|, |v{P+1}|, |v{P+1}|',
              f'v_pk_mul_f32 {vr(P,2)}, {vr(P,2)}, {vr(Lr+2,2)} op_sel_hi:[1,0]',
              f'v_maximum3_f32 v{CHK0}, v{CHK0}, v{Lr}, v{Lr+1}',
              f'v_cvt_pk_bf16_f32 v{P}, v{P}, v{P+1}',
              f'v_min_f32 v{CHK1}, v{CHK1}, v{Lr+1}',
              f'ds_write_b32 v{vOw}, v{P} offset:{B_O+(u%2)*1024}']
        return L
    def rd_of(t, s): return f'ds_read_b128 {vr(OF+4*s,4)}, v{vOr} offset:{B_O+(t%2)*1024+s*512}'
    def wreg(F):
        if F < 52: return WOT + 4*(F%4)
        return [C, SA, OA][(F-52)//4] + 4*(F%4)
    def ld_wo(F):
        L = [f's_add_u32 s43, s41, {F*1024}'] if F % 4 == 0 else []
        return L + [('V', ('F', F), f'buffer_load_dwordx4 {vr(wreg(F),4)}, v{vL16}, s[28:31], s43 offen offset:{(F%4)*1024}')]
    def op_mm(F, src):
        c = F % 4; s = (F // 4) % 2
        return f'v_mfma_f32_16x16x32_bf16 {vr(OUT+4*c,4)}, {vr(src,4)}, {vr(OF+4*s,4)}, ' + ('0' if F < 4 else vr(OUT+4*c,4))
    for l in ldCQ(0): a.e(l)
    a.e(LG0)
    a.e(QK(0))
    POS = [2, 5, 10, 14, 16]
    MX = [[[] for _ in range(5)] for _ in range(64)]
    SL = [[[] for _ in range(5)] for _ in range(64)]
    def at(T, k, L): SL[T][k] += L
    PRIO = {1: 3, 3: 2, 5: 1, 7: 0}
    for T in range(64):
        u, kt = divmod(T, 8); first = (u == 0)
        if kt > 0: MX[T][0] += [PV(u, kt-1, 1)]
        elif u > 0: MX[T][0] += [PV(u-1, 7, 1)]
        if kt < 7: MX[T][1] += [QK(kt+1)]
        elif u < 7: MX[T][1] += [QK(0)]; at(T, 0, [LG0])
        MX[T][2] += [PV(u, kt, 0)]
        if first:
            if kt < 7: at(T, 0, [wv(('K', kt+1))])
            at(T, 1, [wv(('V', 2*kt+1))])
            if kt < 6:
                at(T, 1, [ldV(2*kt+4)]); at(T, 2, [ldV(2*kt+5)] + ([ldK(kt+4)] if kt+4 < 8 else []))
        if u > 0:
            if kt == 0:
                pp = parts(u-1); at(T, 3, pp[0:1]); at(T+1, 0, pp[1:3]); at(T+1, 1, pp[3:4]); at(T+1, 2, pp[4:5])
            if kt == 1: at(T, 4, [LG0, 's_barrier'])
            if kt == 2:
                nr = norm_rd(u-1); at(T, 0, nr[0:2]); at(T, 1, nr[2:3]); at(T, 2, nr[3:4]); at(T+1, 0, nr[4:6])
            if kt == 3: at(T, 2, [LG0])
            if kt == 4: at(T, 0, role(norm_do(u-1)))
            if kt == 5 and u < 7: MX[T][4] += zero(u-1)
        if u > 1:
            if kt == 2: at(T, 2, [rd_of(u-2, 0)])
            if kt == 3: at(T, 1, [rd_of(u-2, 1)])
        if kt == 6 and u < 7:
            cq = ldCQ(u+1); at(T, 3, cq[0:2]); at(T, 4, cq[2:5])
        if 'noprio' not in OPT and kt in PRIO: at(T, 4, [f's_setprio {PRIO[kt]}'])
    for F in range(4): at(13+F, 2, ld_wo(F))
    for F in range(48):
        t, f = divmod(F, 8)
        if t < 5: T, k = 8*(t+2)+3+f, 3
        else: T, k = 59 + f//2, (3 if f%2 == 0 else 4)
        at(T, k-1, [wv(('F', F))])
        MX[T][k] += [op_mm(F, wreg(F))]
        at(T, k, ld_wo(F+4))
    at(52, 2, [('V', ('X', 0), f'buffer_load_dwordx4 {vr(XR,4)}, v{vL16}, s[16:19], s40 offen')])
    at(53, 2, [('V', ('W', 0), f'buffer_load_dwordx4 {vr(WR,4)}, v{vL16}, s[20:23], 0 offen')])
    ST = [20, 21, 22, 23, 28, 29, 30, 31, 36, 37, 38, 39]
    for i, T in enumerate(ST):
        if i % 4 == 0: at(T, 0, [f's_add_u32 m0, s42, {i*1024}', f's_add_u32 s46, s41, {(52+i)*1024}'])
        at(T, 1, [('V', ('F', 52+i), f'buffer_load_dwordx4 v{vL16}, s[28:31], s46 offen offset:{(i%4)*1024} lds')])
    if 'nopf' not in OPT:
        at(8, 1, firstonly([f'buffer_load_dword v{vT1}, v{vPF}, s[4:7], s12 offen']))
    def rd_wo(F): return f'ds_read_b128 {vr(wreg(F),4)}, v{vT0} offset:{(F-52)*1024}'
    at(62, 0, [f'v_add_u32 v{vT0}, s42, v{vL16}'])
    at(62, 2, [rd_wo(60), rd_wo(61)]); at(63, 0, [rd_wo(62), rd_wo(63)]); at(63, 1, [rd_wo(52), rd_wo(53)]); at(63, 2, [rd_wo(54), rd_wo(55)]); at(63, 3, [rd_wo(56), rd_wo(57)]); at(63, 4, [rd_wo(58), rd_wo(59)])
    for T in range(64):
        u, kt = divmod(T, 8); cur = SA if kt%2==0 else SB
        a.c(f'tile u={u} kt={kt}')
        if kt == 0: stamp()
        for p in range(17):
            if p in POS:
                k = POS.index(p)
                for l in MX[T][k] + SL[T][k]: emit(l)
            if p < 16: a.e(f'v_exp_f32 v{cur+p}, v{cur+p}')
    a.c('tail')
    stamp('all')
    a.e(PV(7, 7, 1))
    for l in parts(7): a.e(l)
    a.e(LG0); stamp('tail'); a.e('s_barrier'); stamp('tail')
    for l in role(norm_rd(7)): a.e(l)
    a.e(rd_of(6, 0)); a.e(rd_of(6, 1))
    a.e(LG0); stamp('tail')
    chk = [f'v_mov_b32 v{vT0}, 0x7f800000', f'v_cmp_lt_f32 vcc, v{CHK0}, v{vT0}', f'v_mov_b32 v{vT0}, {f2u(2.0**-105):#x}', f'v_cmp_ge_f32 s[50:51], v{CHK1}, v{vT0}',
           's_lshl_b32 s45, s44, 2', f'v_add_u32 v{vT1}, s45, v{vHI}', 's_and_b64 vcc, vcc, s[50:51]', 's_cmp_eq_u64 vcc, -1', 's_cselect_b32 s45, 0, 1', f'v_mov_b32 v{vT0}, s45', f'ds_write_b32 v{vT1}, v{vT0}']
    for l in role(norm_do(7) + chk): a.e(l)
    stamp('tail')
    emit(wv(('F', 51)))
    for f in range(8): a.e(op_mm(48+f, wreg(48+f)))
    a.e(LG0); stamp('tail'); a.e('s_barrier'); stamp('tail')
    a.e(rd_of(7, 0)); a.e(rd_of(7, 1))
    a.e(f'ds_read_b128 {vr(LT,4)}, v{vHI}')
    a.e('s_waitcnt vmcnt(0) lgkmcnt(1)')
    for f in range(8): a.e(op_mm(56+f, wreg(56+f)))
    a.e(LG0)
    a.e(f'v_or3_b32 v{LT}, v{LT}, v{LT+1}, v{LT+2}\nv_or_b32 v{LT}, v{LT}, v{LT+3}\nv_readfirstlane_b32 s50, v{LT}')
    if 'noredo' not in OPT: a.e('s_cmp_gt_u32 s50, s33\ns_cbranch_scc1 B_redo')
    stamp('all')
    SC = ' sc1' if 'allsc' in OPT else ''
    a.e(f'v_and_b32 v{vT0}, 15, v1\nv_mul_u32_u24 v{vT0}, {B_AROW}, v{vT0}\nv_lshrrev_b32 v{vT1}, 4, v1\nv_lshl_add_u32 v{vT0}, v{vT1}, 4, v{vT0}\ns_lshl_b32 s50, s32, 7\nv_add_u32 v{vT0}, s50, v{vT0}')
    a.e(f's_mul_i32 s50, s32, {B_AROW}\nv_add_u32 v{vT1}, s50, v{vL16}')
    XFL, WF, HF, DD, P = K, K+8, K+16, K+24, V
    HP, NP, OP, T4 = V+8, V+12, V+16, V+20
    a.e('s_mov_b32 exec_lo, 0x00ff00ff\ns_mov_b32 exec_hi, 0x00ff00ff')
    for c in range(4):
        a.e(f'ds_write_b128 v{vT0}, {vr(OUT+4*c,4)} offset:{B_SUM+(c%2)*1024+(c//2)*64}')
    a.e('s_mov_b64 exec, -1')
    unpack(a, XFL, XR, 4); unpack(a, WF, WR, 4)
    S1, S2, S3, S4 = T4, T4+4, T4+8, T4+12
    def sum8(dst, src):
        a.e(f'v_pk_add_f32 {vr(dst,2)}, {vr(src,2)}, {vr(src+2,2)}\nv_pk_add_f32 {vr(dst+2,2)}, {vr(src+4,2)}, {vr(src+6,2)}\nv_pk_add_f32 {vr(dst,2)}, {vr(dst,2)}, {vr(dst+2,2)}\nv_add_f32 v{dst}, v{dst}, v{dst+1}')
    sum8(S4, WF)
    a.e(LG0); stamp('tail'); a.e('s_barrier')
    a.e(f'ds_read_b128 {vr(P,4)}, v{vT1} offset:{B_SUM}\nds_read_b128 {vr(P+4,4)}, v{vT1} offset:{B_SUM+1024}')
    a.e(f's_lshr_b32 s50, s40, 10\ns_sub_u32 s51, 0xffff, s50\ns_lshl_b32 s45, s32, 2\nv_add_u32 v{vT0}, s45, v{vHI}\nv_and_b32 v{vT1}, 7, v1\nv_lshl_add_u32 v{vT1}, v{vT1}, 2, v{vHI}')
    a.e(LG0); stamp('tail')
    for r in range(4): a.e(f'v_cvt_pk_bf16_f32 v{HP+r}, v{P+r}, v{P+4+r}')
    unpack(a, HF, HP, 4)
    for p in range(4): a.e(f'v_pk_add_f32 {vr(HF+2*p,2)}, {vr(HF+2*p,2)}, {vr(XFL+2*p,2)}')
    pack(a, HP, HF, 4)
    unpack(a, HF, HP, 4)
    a.e(f'v_readfirstlane_b32 s60, v{HF}')
    for p in range(4):
        a.e(f'v_pk_add_f32 {vr(DD+2*p,2)}, {vr(HF+2*p,2)}, s[60:61] op_sel_hi:[1,0] neg_lo:[0,1] neg_hi:[0,1]')
    a.e(f'v_pk_mul_f32 {vr(S2,2)}, {vr(DD,2)}, {vr(DD,2)}\nv_pk_mul_f32 {vr(S3,2)}, {vr(DD,2)}, {vr(WF,2)}')
    a.e(f'v_pk_add_f32 {vr(S1,2)}, {vr(DD,2)}, {vr(DD+2,2)}\nv_pk_add_f32 {vr(S1+2,2)}, {vr(DD+4,2)}, {vr(DD+6,2)}')
    for p in range(1, 4):
        a.e(f'v_pk_fma_f32 {vr(S2,2)}, {vr(DD+2*p,2)}, {vr(DD+2*p,2)}, {vr(S2,2)}\nv_pk_fma_f32 {vr(S3,2)}, {vr(DD+2*p,2)}, {vr(WF+2*p,2)}, {vr(S3,2)}')
    a.e(f'v_pk_add_f32 {vr(S1,2)}, {vr(S1,2)}, {vr(S1+2,2)}')
    a.e(f'v_add_f32 v{S2}, v{S2}, v{S2+1}\nv_add_f32 v{S3}, v{S3}, v{S3+1}\nv_add_f32 v{S1}, v{S1}, v{S1+1}')
    a.e(f'v_permlane32_swap_b32 v{S3}, v{S4}\nv_permlane32_swap_b32 v{S1}, v{S2}')
    a.e(f'v_add_f32 v{S3}, v{S3}, v{S4}\nv_add_f32 v{S1}, v{S1}, v{S2}')
    a.e(f'v_permlane16_swap_b32 v{S1}, v{S3}\nv_add_f32 v{S1}, v{S1}, v{S3}')
    row16_sum(a, S1)
    a.e(f'v_readlane_b32 s62, v{S1}, 0\nv_readlane_b32 s63, v{S1}, 32\nv_readlane_b32 s46, v{S1}, 16\nv_readlane_b32 s47, v{S1}, 48')
    stamp('tail')
    dl, mm_, vv, rr = T4, T4+2, T4+4, T4+6
    a.e(f'v_mov_b32 v{vv}, {f2u(1/512):#x}\nv_mul_f32 v{dl}, s62, v{vv}\nv_mul_f32 v{vv}, s63, v{vv}\nv_add_f32 v{mm_}, s60, v{dl}\nv_fma_f32 v{vv}, -v{dl}, v{dl}, v{vv}')
    a.e(f'v_cvt_pk_bf16_f32 v{vv}, v{mm_}, v{vv}\nv_lshlrev_b32 v{mm_}, 16, v{vv}\nv_and_b32 v{vv}, 0xffff0000, v{vv}')
    a.e(f'v_add_f32 v{vv}, {f2u(1e-5):#x}, v{vv}\nv_sub_f32 v{rr}, s60, v{mm_}')
    rnd_bf16(a, vv, vv)
    a.e(f'v_sqrt_f32 v{vv}, v{vv}\nv_mul_f32 v{rr}, s47, v{rr}')
    rnd_bf16(a, vv, vv)
    a.e(f'v_rcp_f32 v{vv}, v{vv}\nv_add_f32 v{rr}, s46, v{rr}\nv_mul_f32 v{rr}, v{rr}, v{vv}')
    rnd_bf16(a, rr, rr)
    a.e(f'v_ashrrev_i32 v{dl}, 31, v{rr}\nv_or_b32 v{dl}, 0x80000000, v{dl}\nv_xor_b32 v{rr}, v{rr}, v{dl}\nv_and_b32 v{rr}, 0xffff0000, v{rr}\nv_or_b32 v{rr}, s51, v{rr}')
    a.e(f'ds_write_b32 v{vT0}, v{rr} offset:32')
    for p in range(4):
        a.e(f'v_pk_add_f32 {vr(DD+2*p,2)}, {vr(HF+2*p,2)}, {vr(mm_,2)} op_sel_hi:[1,0] neg_lo:[0,1] neg_hi:[0,1]')
    pack(a, NP, DD, 4)
    unpack(a, DD, NP, 4)
    for p in range(4): a.e(f'v_pk_mul_f32 {vr(DD+2*p,2)}, {vr(DD+2*p,2)}, {vr(vv,2)} op_sel_hi:[1,0]')
    pack(a, NP, DD, 4)
    a.e(LG0 + '\ns_barrier')
    a.e(f'ds_read_b32 v{dl}, v{vT1} offset:32')
    unpack(a, DD, NP, 4)
    for p in range(4): a.e(f'v_pk_add_f32 {vr(HF+2*p,2)}, {vr(HF+2*p,2)}, {vr(DD+2*p,2)}')
    pack(a, OP, HF, 4)
    a.e(LG0)
    a.e(f'v_cmp_gt_u32 vcc, v{dl}, v{rr}\ns_and_b32 s45, vcc_lo, 0xff\ns_bcnt1_i32_b32 s45, s45\ns_cmp_lt_u32 s45, 2\ns_cbranch_scc1 B_cand')
    a.e(f'buffer_store_dwordx4 {vr(OP,4)}, v{vL16}, s[24:27], s40 offen{SC}\ns_branch B_pub')
    a.e('B_cand:\ns_setprio 3')
    a.e(f's_add_u32 s50, s40, {WS_HN:#x}\nbuffer_store_dwordx4 {vr(NP,4)}, v{vL16}, s[28:31], s50 offen sc1')
    a.e(f's_add_u32 s50, s40, {WS_H:#x}\nbuffer_store_dwordx4 {vr(HP,4)}, v{vL16}, s[28:31], s50 offen sc1')
    a.e(f'buffer_store_dwordx4 {vr(OP,4)}, v{vL16}, s[24:27], s40 offen sc1')
    a.e(f's_lshl_b32 s50, s2, {KSH-2}\ns_add_u32 s50, s50, s45\ns_lshl_b32 s50, s50, 2\ns_add_u32 s50, s50, {WS_KEY:#x}')
    stamp('tail')
    a.e(f's_mov_b64 exec, 1\ns_waitcnt vmcnt(0)\nbuffer_store_dword v{rr}, off, s[28:31], s50 sc1\ns_mov_b64 exec, -1')
    a.e('B_pub:')
    def dump():
        if 'stamp' in OPT:
            a.e('s_waitcnt vmcnt(0)')
            k = nst[0]; stamp('all'); nst[0] = k
            a.e('s_memrealtime s[98:99]\ns_waitcnt lgkmcnt(0)\ns_mov_b64 exec, -1\nv_mov_b32 v20, 0\nv_lshlrev_b32 v21, 2, v1')
            for i in range(k+1):
                a.e(f's_sub_u32 s50, s{64+2*i}, s64\nv_writelane_b32 v20, s50, {i}')
            a.e(f'v_writelane_b32 v20, s96, 16\nv_writelane_b32 v20, s98, 17')
            a.e(f's_lshr_b32 s50, s40, 3\ns_add_u32 s50, s50, {WS_DBG:#x}\ns_mov_b64 exec, 0xffffffff\nbuffer_store_dword v20, v21, s[28:31], s50 offen')
    stamp('ffn')
    a.e('s_cmp_lg_u32 s54, 0\ns_cbranch_scc1 B_ffn')
    a.e('B_fin:')
    k0 = nst[0]
    if 'stffn' in OPT: nst[0] = 12
    dump()
    nst[0] = k0
    a.e('B_done:\ns_endpgm')
    a.e('B_ffn:')
    WFR, KR, XS, AC = 16, 64, 80, 104
    vG, vC = 6, 5
    a.e(f'v_lshrrev_b32 v{vG}, 4, v1\nv_bfe_u32 v{vT0}, v1, 2, 2\nv_lshl_add_u32 v{vT0}, v{vG}, 3, v{vT0}\nv_lshlrev_b32 v{vT0}, 6, v{vT0}\nv_and_b32 v{vT1}, 3, v1\nv_lshl_add_u32 v{vT0}, v{vT1}, 3, v{vT0}\nv_add_u32 v{vT0}, s42, v{vT0}')
    a.e('s_lshl_b32 s45, s52, 4\ns_mov_b32 s46, s53\ns_mov_b32 m0, s42\ns_lshl_b32 s50, s54, 2\ns_add_u32 s50, s50, 4')
    a.e(f'B_stage:\nbuffer_load_dwordx4 v{vST}, s[56:59], s46 offen lds\ns_add_u32 m0, m0, 1024\ns_add_u32 s46, s46, s45\ns_sub_u32 s50, s50, 1\ns_cmp_lg_u32 s50, 0\ns_cbranch_scc1 B_stage')
    def trf(s):
        for ct in range(2):
            for hf in range(2):
                a.e(f'ds_read_b64_tr_b16 {vr(WFR+8*s+4*ct+2*hf,2)}, v{vT0} offset:{s*2048+hf*256+ct*32}')
    if 'stffn' in OPT:
        stamp('ffn'); a.e('s_waitcnt vmcnt(0)'); stamp('ffn')
    a.e(f's_cmp_lg_u32 s32, {POLLW}\ns_cbranch_scc1 B_pw')
    a.e(f'v_lshlrev_b32 v{KR+7}, {KSH+2}, v1\ns_mov_b32 s45, {WS_KEY:#x}\ns_mov_b32 s46, {SPIN}\ns_branch B_pk')
    a.e(f'B_pks:\ns_sleep {SLEEP}')
    a.e('B_pk:')
    for i in range(4): a.e(f'buffer_load_dwordx2 {vr(XS+2*i,2)}, v{KR+7}, s[28:31], s45 offen offset:{i<<KSH} sc1')
    a.e('s_waitcnt vmcnt(0)')
    a.e(f'v_min3_u32 v{vT1}, v{XS}, v{XS+1}, v{XS+2}\nv_min3_u32 v{KR}, v{XS+3}, v{XS+4}, v{XS+5}\nv_min3_u32 v{vT1}, v{vT1}, v{XS+6}, v{XS+7}\nv_min_u32 v{vT1}, v{vT1}, v{KR}')
    a.e(f'v_cmp_ne_u32 vcc, 0, v{vT1}\ns_sub_u32 s46, s46, 1\ns_cbranch_scc1 B_pkd\ns_cmp_eq_u64 vcc, -1\ns_cbranch_scc0 B_pks\nB_pkd:')
    stamp('ffn')
    m1, m2, t0 = KR+4, KR+5, KR+6
    a.e(f'v_min_u32 v{t0}, v{XS}, v{XS+2}\nv_max_u32 v{XS}, v{XS}, v{XS+2}\nv_max3_u32 v{XS+1}, v{XS+1}, v{XS+3}, v{t0}')
    a.e(f'v_min_u32 v{t0}, v{XS+4}, v{XS+6}\nv_max_u32 v{XS+4}, v{XS+4}, v{XS+6}\nv_max3_u32 v{XS+5}, v{XS+5}, v{XS+7}, v{t0}')
    a.e(f'v_min_u32 v{t0}, v{XS}, v{XS+4}\nv_max_u32 v{m1}, v{XS}, v{XS+4}\nv_max3_u32 v{m2}, v{XS+1}, v{XS+5}, v{t0}')
    for mod in ['row_ror:8 row_mask:0xf', 'row_ror:4 row_mask:0xf', 'row_ror:2 row_mask:0xf', 'row_ror:1 row_mask:0xf', 'row_bcast:15 row_mask:0xa', 'row_bcast:31 row_mask:0xc']:
        a.e(f'v_min_u32_dpp v{t0}, v{m1}, v{m1} {mod} bank_mask:0xf')
        a.e(f'v_max_u32_dpp v{m1}, v{m1}, v{m1} {mod} bank_mask:0xf')
        a.e(f'v_max_u32_dpp v{m2}, v{m2}, v{m2} {mod} bank_mask:0xf')
        a.e(f'v_max_u32 v{m2}, v{m2}, v{t0}')
    a.e(f's_mov_b32 exec_lo, 0\ns_mov_b32 exec_hi, 0x80000000\nds_write_b64 v{vHI}, {vr(m1,2)} offset:{B_CAND-B_FLAG}\ns_mov_b64 exec, -1\n' + LG0)
    a.e(f'B_pw:\ns_waitcnt vmcnt(0)\ns_barrier\nds_read_b64 {vr(m1,2)}, v{vHI} offset:{B_CAND-B_FLAG}\n' + LG0)
    stamp('ffn')
    k1 = nst[0]
    a.e(f's_lshl_b32 s45, s32, 8\ns_add_u32 s45, s45, {B_RED}\nv_and_b32 v{vC}, 4, v1\nv_lshlrev_b32 v{vC}, 5, v{vC}\nv_lshl_add_u32 v{vC}, v{vG}, 4, v{vC}\nv_add_u32 v{vC}, s45, v{vC}       ; w*256 + tok*128 + g*16')
    a.e('s_cmp_eq_u32 s54, 2\ns_cbranch_scc1 B_down')
    a.e(f'v_and_b32 v{vT1}, 4, v1\nv_cmp_eq_u32 vcc, 0, v{vT1}\nv_cndmask_b32 v{vT1}, v{m2}, v{m1}, vcc\nv_not_b32 v{vT1}, v{vT1}\nv_and_b32 v{vT1}, 2047, v{vT1}\nv_lshlrev_b32 v{vT1}, 10, v{vT1}\nv_lshl_add_u32 v{vT1}, v{vG}, 4, v{vT1}')
    a.e(f's_lshr_b32 s45, s32, 1\ns_lshl_b32 s45, s45, 8\ns_add_u32 s45, s45, {WS_HN:#x}')
    for s in range(4): a.e(f'buffer_load_dwordx4 {vr(XS+4*s,4)}, v{vT1}, s[28:31], s45 offen offset:{s*64} sc1')
    for s in range(4): trf(s)
    def ffn_mm(ns):
        for s in range(ns):
            for ct in range(2):
                a.e(f'v_mfma_f32_16x16x32_bf16 {vr(AC+4*ct,4)}, {vr(WFR+8*s+4*ct,4)}, {vr(XS+4*s,4)}, ' + ('0' if s == 0 else vr(AC+4*ct,4)))
        a.e('s_mov_b32 exec_lo, 0x00110011\ns_mov_b32 exec_hi, 0x00110011')
        a.e(f'ds_write_b128 v{vC}, {vr(AC,4)}\nds_write_b128 v{vC}, {vr(AC+4,4)} offset:64')
        a.e('s_mov_b64 exec, -1\n' + LG0 + '\ns_barrier\ns_cmp_lg_u32 s32, 0\ns_cbranch_scc1 B_fin')
        a.e(f'v_lshl_add_u32 v{vT0}, v1, 2, v{vHI}')
        for w in range(8): a.e(f'ds_read_b32 v{WFR+w}, v{vT0} offset:{B_RED-B_FLAG+w*256}')
    a.e('s_waitcnt vmcnt(0) lgkmcnt(0)')
    stamp('ffn')
    ffn_mm(4)
    stamp('ffn')
    g_, u_ = WFR, WFR+1
    a.e(f'v_lshlrev_b32 v{vT1}, 1, v1\ns_lshl_b32 s45, s55, 7\ns_add_u32 s45, s45, {WS_ACT:#x}')
    a.e(LG0)
    a.e(f'v_pk_add_f32 {vr(WFR,2)}, {vr(WFR,2)}, {vr(WFR+2,2)}\nv_pk_add_f32 {vr(WFR+4,2)}, {vr(WFR+4,2)}, {vr(WFR+6,2)}\nv_pk_add_f32 {vr(WFR,2)}, {vr(WFR,2)}, {vr(WFR+4,2)}')
    a.e(f'v_cvt_pk_bf16_f32 v{u_}, v{g_}, v{u_}\nv_lshlrev_b32 v{g_}, 16, v{u_}\nv_and_b32 v{u_}, 0xffff0000, v{u_}')
    a.e(f'v_mul_f32 v{WFR+2}, {f2u(-L2E):#x}, v{g_}\nv_exp_f32 v{WFR+2}, v{WFR+2}\nv_add_f32 v{WFR+2}, 1.0, v{WFR+2}\nv_rcp_f32 v{WFR+2}, v{WFR+2}\nv_mul_f32 v{g_}, v{g_}, v{WFR+2}')
    rnd_bf16(a, g_, g_)
    a.e(f'v_mul_f32 v{g_}, v{g_}, v{u_}\nv_mov_b32_dpp v{u_}, v{g_} quad_perm:[1,1,3,3] row_mask:0xf bank_mask:0xf\nv_cvt_pk_bf16_f32 v{g_}, v{g_}, v{u_}')
    a.e(f'v_min_u32 v{g_}, 0xfffeffff, v{g_}')
    a.e(f's_mov_b32 exec_lo, 0x55555555\ns_mov_b32 exec_hi, 0x55555555\nbuffer_store_dword v{g_}, v{vT1}, s[28:31], s45 offen sc1\ns_branch B_fin')
    a.e('B_down:')
    hE, nE, sg, oo = KR+8, KR+9, KR+10, KR+11
    a.e(f'v_cmp_gt_u32 vcc, 32, v1\nv_cndmask_b32 v{sg}, v{m2}, v{m1}, vcc\nv_not_b32 v{oo}, v{sg}\nv_and_b32 v{oo}, 2047, v{oo}\nv_lshlrev_b32 v{oo}, 10, v{oo}\nv_and_b32 v{vT1}, 31, v1\nv_lshl_add_u32 v{oo}, v{vT1}, 1, v{oo}')
    a.e(f's_lshl_b32 s51, s55, 6\ns_add_u32 s45, s51, {WS_H:#x}\ns_add_u32 s46, s51, {WS_HN:#x}')
    a.e(f'buffer_load_ushort v{hE}, v{oo}, s[28:31], s45 offen sc1\nbuffer_load_ushort v{nE}, v{oo}, s[28:31], s46 offen sc1')
    a.e(f'v_and_b32 v{sg}, 0xffff0000, v{sg}\nv_ashrrev_i32 v{vT1}, 31, v{sg}\nv_not_b32 v{vT1}, v{vT1}\nv_or_b32 v{vT1}, 0x80000000, v{vT1}\nv_xor_b32 v{sg}, v{sg}, v{vT1}\nv_and_b32 v{sg}, 0xffff0000, v{sg}')
    a.e(f'v_mul_f32 v{sg}, {f2u(-L2E):#x}, v{sg}\nv_exp_f32 v{sg}, v{sg}\nv_add_f32 v{sg}, 1.0, v{sg}\nv_rcp_f32 v{sg}, v{sg}')
    rnd_bf16(a, sg, sg)
    a.e(f'v_bfe_u32 v{vT1}, v1, 2, 1\nv_lshlrev_b32 v{vT1}, 6, v{vT1}\nv_lshl_add_u32 v{vT1}, v{vG}, 4, v{vT1}')
    a.e(f's_mul_i32 s45, s32, 768\ns_add_u32 s45, s45, {WS_ACT:#x}\ns_cmp_eq_u32 s32, 7\ns_cselect_b32 s50, 0x40000000, s45\ns_mov_b32 s46, {SPIN}')
    for s in range(6): trf(s)
    a.e(LG0)
    a.e(f's_branch B_pa\nB_pas:\ns_sleep {SLEEP}\nB_pa:')
    for s in range(6): a.e(f'buffer_load_dwordx4 {vr(XS+4*s,4)}, v{vT1}, s[28:31], s{45 if s == 0 else 50} offen offset:{s*128} sc1')
    a.e('s_waitcnt vmcnt(0)')
    a.e(f'v_max_u32 v{t0}, v{XS}, v{XS+1}\nv_max_u32 v{vT0}, v{XS+2}, v{XS+3}')
    for i in range(4, 24, 4): a.e(f'v_max3_u32 v{t0}, v{t0}, v{XS+i}, v{XS+i+1}\nv_max3_u32 v{vT0}, v{vT0}, v{XS+i+2}, v{XS+i+3}')
    a.e(f'v_max_u32 v{t0}, v{t0}, v{vT0}\nv_cmp_ne_u32 vcc, -1, v{t0}\ns_sub_u32 s46, s46, 1\ns_cbranch_scc1 B_pad\ns_cmp_eq_u64 vcc, -1\ns_cbranch_scc0 B_pas\nB_pad:')
    nst[0] = k1
    stamp('ffn')
    ffn_mm(6)
    stamp('ffn')
    a.e(f'v_lshlrev_b32 v{hE}, 16, v{hE}\nv_lshlrev_b32 v{nE}, 16, v{nE}')
    a.e(LG0)
    a.e(f'v_pk_add_f32 {vr(WFR,2)}, {vr(WFR,2)}, {vr(WFR+2,2)}\nv_pk_add_f32 {vr(WFR+4,2)}, {vr(WFR+4,2)}, {vr(WFR+6,2)}\nv_pk_add_f32 {vr(WFR,2)}, {vr(WFR,2)}, {vr(WFR+4,2)}\nv_add_f32 v{g_}, v{g_}, v{u_}')
    rnd_bf16(a, g_, g_)
    a.e(f'v_mul_f32 v{g_}, v{g_}, v{sg}')
    rnd_bf16(a, g_, g_)
    a.e(f'v_add_f32 v{g_}, v{g_}, v{nE}')
    rnd_bf16(a, g_, g_)
    a.e(f'v_add_f32 v{g_}, v{g_}, v{hE}\nv_cvt_pk_bf16_f32 v{g_}, v{g_}, v{g_}')
    a.e(f'buffer_store_short v{g_}, v{oo}, s[24:27], s51 offen sc1\ns_branch B_fin')
    a.e('B_redo:')
    a.e('s_mov_b32 s33, 1\ns_nop 7')
    for i in range(4): a.e(f'v_mov_b32 v{NT+i}, 0x7f800000')
    a.e(f'v_add_u32 v{vT1}, s49, v{vN16}\nds_write_b128 v{vT1}, {vr(NT,4)} offset:{B_M0}')
    a.e(LG0); a.e('s_barrier')
    a.e(f's_mov_b32 s50, 0\nv_mov_b32 v{vT0}, v{vL16}\nv_mov_b32 v{vT1}, v{vN16}')
    a.e('B_mx:')
    a.e(f'ds_read_b128 {vr(Q,4)}, v{vT0} offset:{B_Q}'); a.e(LG0)
    for kt in range(8):
        a.e(f'v_mfma_f32_32x32x16_bf16 {vr(SA,16)}, {vr(K+4*kt,4)}, {vr(Q,4)}, 0')
        maxtree(NT, [SA], kt == 0)
    a.e(f'v_sub_f32 v{NT}, 0, v{NT}')
    for i in range(4): a.e(f'ds_min_f32 v{vT1}, v{NT} offset:{B_M0+4*i}')
    a.e(f'v_add_u32 v{vT0}, 1024, v{vT0}\nv_add_u32 v{vT1}, 512, v{vT1}')
    a.e('s_add_u32 s50, s50, 1\ns_cmp_lt_u32 s50, 8\ns_cbranch_scc1 B_mx')
    a.e('s_nop 7\ns_branch B_start')
    return a.L, NV

WS_RT = 0x780000
def rt_wrap(L, ki):
    done = L[1].split()[-1]
    pre = L[:1] + [f'    s_cbranch_scc1 RT_exit{ki}', '    s_memrealtime s[96:97]', '    s_load_dwordx2 s[100:101], s[0:1], 96', '    v_lshrrev_b32 v1, 6, v0', '    s_nop 1', '    v_readfirstlane_b32 s95, v1']
    body = []
    for l in L[2:]:
        if l.strip() == 's_endpgm': body.append(f'    s_branch RT_end{ki}')
        else: body.append(l)
    post = [f'RT_end{ki}:', '    s_waitcnt vmcnt(0) lgkmcnt(0)', '    s_memrealtime s[98:99]', '    s_lshl_b32 s94, s2, 4', '    s_add_u32 s94, s94, s95', '    s_lshl_b32 s94, s94, 3',
            f'    s_add_u32 s94, s94, {WS_RT + ki*32768:#x}', '    s_mov_b64 exec, 1', '    s_waitcnt lgkmcnt(0)', '    v_mov_b32 v2, s96', '    v_mov_b32 v3, s98', '    v_mov_b32 v1, s94',
            '    global_store_dwordx2 v1, v[2:3], s[100:101]', f'RT_exit{ki}:', '    s_endpgm']
    return pre + body + post

def build():
    ref = open('sequential_preLN__grouped_kv_mqa__moe_arch_mod__prompt.s.ref').read().split('\n')
    head = [l for l in ref if l.startswith(';') and '@launch' not in l and 'Override' not in l and 'grid=ceil' not in l]
    bl, bnv = gen_b()
    ks = [('proj_kernel', gen_a(), 240, 256, 512, A_LDS), ('attn_kernel', bl, bnv, 256, 512, B_LDS)]
    for i in range(int(os.environ.get('NEMPTY', '0'))):
        ks.append((f'empty{i}_kernel', ['    s_endpgm'], 8, 1, 64, 0))
    out = head + [f'; @launch kernel={n} grid=({g},1,1) block=({b},1,1) lds={l}' for n, _, _, g, b, l in ks]
    out += ['.amdgcn_target "amdgcn-amd-amdhsa--gfx950"', '.text']
    for ki, (n, L, *_) in enumerate(ks):
        if 'rt' in OPT and not n.startswith('empty'): L = rt_wrap(L, ki)
        P, added = pad(L)
        print(n, 'instr lines', len(P), 'nops added', added, file=sys.stderr)
        out += header(n) + P
    out += ['.section .rodata,"a"']
    for n, _, nv, *_ in ks:
        out += ['.p2align 6', desc(n, nv)]
    return '\n'.join(out) + '\n'

if __name__ == '__main__':
    dst = sys.argv[1] if len(sys.argv) > 1 else 'sequential_preLN__grouped_kv_mqa__moe_arch_mod__prompt.s'
    open(dst, 'w').write(build())
```
